```python
import torch

def _softmax(x, axis=-1):
    return torch.softmax(x, dim=axis)
def _gelu(x):
    return torch.nn.functional.gelu(x, approximate="tanh")
def _silu(x):
    return torch.nn.functional.silu(x)
def _sigmoid(x):
    return torch.sigmoid(x)
def _layernorm(x, axis=-1, eps=1e-5):
    m = x.mean(dim=axis, keepdim=True)
    v = x.var(dim=axis, keepdim=True, unbiased=False)
    return (x - m) / torch.sqrt(v + eps)
def _scatter_add(tgt, idx, src, axis=0):
    return tgt.clone().index_add_(axis, idx, src)
def _segment_sum(src, seg, n):
    out = torch.zeros((n,) + src.shape[1:], dtype=src.dtype)
    return out.index_add_(0, seg, src)
def _pad(x, pw):
    flat = tuple(v for pair in reversed(pw) for v in pair)
    return torch.nn.functional.pad(x, flat)

kernel_name = 'sequential_preLN__mha_block_cached__glu_gated_swiglu__decode'

def setup_inputs():

    _w = (lambda a: (lambda t: t.to(torch.bfloat16) if t.is_floating_point() else t)(torch.as_tensor(a)))
    def _A_setup():
        B, Sq, D = 1, 1, 576
        H, Sk, Dh = 32, 8192, 128
        return {
            "x": _w((lambda *s: torch.randn(*s, dtype=torch.bfloat16) * 0.05)(B, Sq, D)),
            "k_cache": _w((lambda *s: torch.randn(*s, dtype=torch.bfloat16) * 1.6)(B, H, Sk, Dh)),
            "v_cache": _w((lambda *s: torch.randn(*s, dtype=torch.bfloat16) * 0.8)(B, H, Sk, Dh)),
            "wq": _w((lambda *s: torch.randn(*s, dtype=torch.bfloat16) * 1.6)(D, H * Dh) * (D ** -0.5)),
            "wo": _w((lambda *s: torch.randn(*s, dtype=torch.bfloat16) * 0.8)(H * Dh, D) * ((H * Dh) ** -0.5)),
        }
    _A_in = _A_setup()

    def _B_setup():
        B, S, D, F = 1, 1, 576, 4608
        return {
            "x": _w((lambda *s: torch.randn(*s, dtype=torch.bfloat16) * 0.05)(B, S, D)),
            "w1": _w((lambda *s: torch.randn(*s, dtype=torch.bfloat16) * 0.4)(D, F) * (2.0 / D) ** 0.5),
            "w3": _w((lambda *s: torch.randn(*s, dtype=torch.bfloat16) * 0.4)(D, F) * (2.0 / D) ** 0.5),
            "w2": _w((lambda *s: torch.randn(*s, dtype=torch.bfloat16) * 0.4)(F, D) * (2.0 / F) ** 0.5),
        }
    _B_in = _B_setup()

    return {
        "A_x": _A_in["x"],
        "A_k_cache": _A_in["k_cache"],
        "A_v_cache": _A_in["v_cache"],
        "A_wq": _A_in["wq"],
        "A_wo": _A_in["wo"],
        "B_x": _B_in["x"],
        "B_w1": _B_in["w1"],
        "B_w3": _B_in["w3"],
        "B_w2": _B_in["w2"],
    }

def reference(A_x, A_k_cache, A_v_cache, A_wq, A_wo, B_x, B_w1, B_w3, B_w2):
    def _A_ref(x, k_cache, v_cache, wq, wo):
        B, Sq, D = x.shape
        H, Dh = 32, 128
        q = (lambda x, *d: x.permute(*d))((x @ wq).reshape(B, Sq, H, Dh), 0, 2, 1, 3)
        scores = torch.einsum("bhqd,bhkd->bhqk", q, k_cache) * (Dh ** -0.5)
        p = _softmax(scores, axis=-1)
        o = torch.einsum("bhqk,bhkd->bhqd", p, v_cache)
        return (lambda x, *d: x.permute(*d))(o, 0, 2, 1, 3).reshape(B, Sq, H * Dh) @ wo

    def _B_ref(x, w1, w3, w2):
        gate = torch.einsum("bsd,df->bsf", x, w1)
        up = torch.einsum("bsd,df->bsf", x, w3)
        h = _silu(gate) * up
        out = torch.einsum("bsf,fd->bsd", h, w2)
        return out

    x = A_x
    h = x + _A_ref(_layernorm(x, axis=-1), A_k_cache, A_v_cache, A_wq, A_wo)
    h2 = h + _B_ref(_layernorm(h, axis=-1), B_w1, B_w3, B_w2)
    return h2
```

```python
import re

TRANS = ("v_exp_f32", "v_log_f32", "v_rcp_f32", "v_rsq_f32", "v_sqrt_f32", "v_sin_f32", "v_cos_f32")

def _expand(tok):
    tok = tok.strip()
    tok = tok.lstrip("-")
    if tok.startswith("abs(") and tok.endswith(")"):
        tok = tok[4:-1]
    if tok.startswith("|") and tok.endswith("|"):
        tok = tok[1:-1]
    m = re.fullmatch(r"([vsa])\[(\d+):(\d+)\]", tok)
    if m:
        return [f"{m.group(1)}{i}" for i in range(int(m.group(2)), int(m.group(3)) + 1)]
    m = re.fullmatch(r"([vsa])(\d+)", tok)
    if m:
        return [tok]
    if tok == "vcc":
        return ["vcc"]
    if tok in ("vcc_lo", "vcc_hi"):
        return ["vcc"]
    if tok == "exec":
        return ["exec"]
    if tok == "m0":
        return ["m0"]
    return []

class Ins:
    def __init__(self, text):
        self.text = text
        t = text.split(";")[0].strip()
        self.is_label = t.endswith(":")
        self.is_dir = t.startswith(".")
        self.op = t.split()[0] if t else ""
        self.w = set(); self.r = set()
        self.kind = "other"
        self.dpp = False
        self.srcC = []; self.srcAB = []
        if self.is_label or self.is_dir or not t:
            self.kind = "none"; return
        rest = t[len(self.op):].strip()
        parts = [p.strip() for p in rest.split(",")] if rest else []
        ops = []
        depth = 0; cur = ""
        for ch in rest:
            if ch == "[": depth += 1
            if ch == "]": depth -= 1
            if ch == "," and depth == 0:
                ops.append(cur.strip()); cur = ""
            else:
                cur += ch
        if cur.strip(): ops.append(cur.strip())
        mods = ""
        if ops:
            last = ops[-1].split()
            ops[-1] = last[0]
            mods = " ".join(last[1:])
        self.ops = ops; self.mods = mods
        op = self.op
        E = _expand
        if op.startswith("v_mfma"):
            self.kind = "mfma"
            self.w = set(E(ops[0])); self.srcAB = E(ops[1]) + E(ops[2]); self.srcC = E(ops[3])
            self.r = set(self.srcAB + self.srcC)
            self.passes = 8 if "32x32" in op else 4
        elif op.startswith("v_"):
            self.kind = "valu"
            self.dpp = ("_dpp" in op) or any(k in mods for k in ("row_", "quad_perm", "wave_"))
            if op.startswith("v_cmp"):
                self.w = set(E(ops[0]))
                for o in ops[1:]: self.r |= set(E(o))
            elif op.startswith("v_permlane"):
                self.w = set(E(ops[0]) + E(ops[1])); self.r = set(self.w)
            elif op.startswith(("v_add_co", "v_sub_co", "v_addc_co", "v_subb_co")):
                self.w = set(E(ops[0]) + E(ops[1]))
                for o in ops[2:]: self.r |= set(E(o))
            elif op == "v_nop":
                pass
            else:
                self.w = set(E(ops[0]))
                for o in ops[1:]: self.r |= set(E(o))
                if op.startswith(("v_fmac", "v_dot2c", "v_writelane")) or self.dpp:
                    self.r |= self.w
                if op.startswith("v_cndmask") and len(ops) == 3:
                    self.r.add("vcc")
            self.dppsrc = set(E(ops[1])) if self.dpp else set()
        elif op.startswith(("buffer_", "global_", "ds_")):
            self.kind = "ds" if op.startswith("ds_") else "vmem"
            isload = ("load" in op or "read" in op or "permute" in op or "swizzle" in op) and "lds" not in mods.split() and "_lds_" not in op
            if "atomic" in op and "sc0" in mods.split():
                isload = True
            if op in ("buffer_inv", "buffer_wbl2"):
                pass
            elif isload:
                self.w = set(E(ops[0]))
                for o in ops[1:]: self.r |= set(E(o))
                if "atomic" in op: self.r |= self.w
            else:
                for o in ops: self.r |= set(E(o))
            self.wide_store = (not isload) and self.kind == "vmem" and ("dwordx4" in op or "dwordx3" in op)
            if self.wide_store:
                d = ops[0] if op.startswith("buffer_") else ops[1]
                self.store_data = set(E(d))
        elif op.startswith("s_"):
            self.kind = "salu"
            if op.startswith(("s_cmp", "s_cbranch", "s_branch", "s_waitcnt", "s_barrier", "s_nop", "s_endpgm", "s_sleep", "s_setprio", "s_bitcmp")):
                for o in ops: self.r |= set(E(o))
            else:
                if ops: self.w = set(E(ops[0]))
                for o in ops[1:]: self.r |= set(E(o))
                if "saveexec" in op: self.w.add("exec")

    def states(self):
        if self.kind == "none": return 0
        if self.op == "s_nop": return int(self.ops[0]) + 1
        return 1

def need(p, c):
    n = 0
    pw = p.w
    if p.kind == "valu":
        vw = {x for x in pw if x[0] in "va" and x != "vcc"}
        sw = {x for x in pw if x[0] == "s" or x == "vcc"}
        if c.kind == "valu":
            if c.dpp and (vw & c.dppsrc): n = max(n, 2)
            if c.op.startswith(("v_readlane", "v_readfirstlane")) and (vw & c.r): n = max(n, 1)
            if c.op.startswith("v_permlane") and (vw & c.r): n = max(n, 2)
            if sw & c.r: n = max(n, 4 if c.op.startswith(("v_readlane", "v_writelane")) else 2)
            if p.op.startswith(TRANS) and (vw & c.r): n = max(n, 1)
            if "sdwa" in p.op and (vw & (c.r | c.w)): n = max(n, 1)
        if p.op.startswith("v_dot2"):
            if vw & (c.r | c.w):
                same = c.op.split("_dpp")[0].split("_e32")[0] == p.op.split("_dpp")[0].split("_e32")[0]
                if same:
                    srcs = set()
                    for o in c.ops[1:3]: srcs |= set(_expand(o))
                    if vw & srcs: n = max(n, 3)
                else:
                    n = max(n, 3)
        if c.kind == "mfma" and (vw & c.r): n = max(n, 2)
        if c.kind == "vmem" and (sw & c.r): n = max(n, 5)
        if c.kind == "salu" and (sw & c.r): n = max(n, 1)
    if p.kind == "mfma":
        tab = {4: (0, 6, 8), 8: (0, 10, 12)}[p.passes]
        if c.kind == "mfma":
            if pw & set(c.srcAB): n = max(n, tab[2])
            if pw & set(c.srcC):
                n = max(n, tab[0] if (set(c.srcC) == pw and c.passes == p.passes) else tab[1])
            elif pw & c.w: n = max(n, tab[2])
        elif c.kind in ("valu", "vmem", "ds"):
            if pw & (c.r | c.w): n = max(n, tab[2])
        if c.kind == "valu" and (set(p.srcC) & c.w): n = max(n, 3 if p.passes == 4 else 7)
    if p.kind == "vmem" and getattr(p, "wide_store", False):
        if c.kind in ("valu", "mfma") and (p.store_data & c.w): n = max(n, 2)
        elif p.store_data & c.w: n = max(n, 1)
    if p.kind == "salu" and "m0" in pw and c.kind in ("vmem", "ds") and ("lds" in c.text): n = max(n, 1)
    return n

class Asm:
    def __init__(self):
        self.L = []
        self.vm = []
        self.nops = 0
    def raw(self, text):
        self.L.append(Ins(text))
    def __call__(self, text, tag=None):
        for t in text.split("\n"):
            t = t.strip()
            if not t: continue
            ins = Ins(t)
            if ins.kind not in ("none",):
                dist = 0; req = 0
                for p in reversed(self.L):
                    if dist >= 20: break
                    if p.kind == "none": continue
                    k = need(p, ins)
                    if k > dist: req = max(req, k - dist)
                    dist += p.states()
                if req > 0:
                    self.L.append(Ins(f"s_nop {req-1}")); self.nops += req
            self.L.append(ins)
            if ins.kind == "vmem":
                self.vm.append(tag)
    def wait(self, tag, extra=""):
        if tag not in self.vm:
            if extra: self(f"s_waitcnt {extra}")
            return
        idx = max(i for i, t in enumerate(self.vm) if t == tag)
        n = len(self.vm) - 1 - idx
        n = min(n, 63)
        self(f"s_waitcnt vmcnt({n}){(' ' + extra) if extra else ''}")
        self.vm = self.vm[len(self.vm) - n:] if n > 0 else []
    def wait_all(self, extra=""):
        self(f"s_waitcnt vmcnt(0){(' ' + extra) if extra else ''}")
        self.vm = []
    def pending(self, tag):
        return tag in self.vm
    def text(self):
        return "\n".join(i.text for i in self.L) + "\n"
```

```python
import sys, os
sys.path.insert(0, "dev")
from asmdsl import Asm

NAME = "sequential_preLN__mha_block_cached__glu_gated_swiglu__decode_kernel"
_ref = "sequential_preLN__mha_block_cached__glu_gated_swiglu__decode.s.ref"
HEADER = open(_ref).read().split("; Override launch")[0] if os.path.exists(_ref) else ""

WS_O, WS_ML, WS_Y, WS_Z, WS_ST = 0, 0x20000, 0x21000, 0x26000, 0x80000
WS_SIZE = 0x100000
OOB = 0x7ffffff0
L_QP, L_QB, L_MX, L_LW, L_OP = 0, 4096, 4352, 4384, 4608
L_OC, L_YP = 8704, 10752
L_ST, L_DUM, L_HC, L_GP, L_CP = 8704, 8832, 9216, 12288, 16640
L_W2 = 21504
LDS_SIZE = L_W2 + 40960
LOG2E = 0x3fb8aa3b
SCALE = 0x3db504f3
FULL = "row_mask:0xf bank_mask:0xf"

DEF = dict(DSq=5, sel1=1, sel2=1, gate2=25, gsl2=2, gate3=63, gsl3=2, zt=1, sl={'O2': 4}, k1=1, k2=1, k3=1, nosig=0, noclr=0, noml=0, skip=('f2', 'f8', 'b1', 'iss', 'cb'), polllate=0, pat="QKK", B=4, DS=4, polK="nt", polQ="", polW="", polF="", pol2="nt", nFpre=5, nOpre=4, stamps=False, spin=2000000,
           qoob=0, ooob=0, foob=0, cpf=1, mltile=16, lnstep=4, boost=1, fbar=1, clrstep=4, RD=22, pfq=0, pfw=1, pf2=0, pfstride=64, pfat=14, pfgap=3, kpre=0, w2first=1)
STAMPS = {}

def gen(**kw):
    c = dict(DEF); c.update(kw)
    a = Asm()
    N = 32
    DS = c["DS"]
    polK, polQ, polW, polF = c["polK"], c["polQ"], c["polW"], c["polF"]
    sK, sV, sQ, sX, sWS, sW, sW2, sD, sW3 = 28, 32, 36, 40, 44, 48, 52, 56, 8
    def srd(b): return f"s[{b}:{b+3}]"
    S_XG, S_J, S_HEAD, S_SPLIT, S_OK, S_OV, S_OQ, S_IDX, S_T0, S_T1, S_T2, S_SPIN = 60, 61, 62, 63, 64, 65, 66, 67, 68, 69, 70, 71
    S_MA, S_MC, S_E = 72, 74, 76
    S_M = 78; S_W = 3; S_SLOT = 79
    S_STAMP = 80
    S_WT = 4
    stn = []
    def stamp(name):
        if c["stamps"] and name not in c["skip"]:
            k = len(stn); stn.append(name)
            assert k < 10
            a(f"s_memrealtime s[{S_STAMP+2*k}:{S_STAMP+2*k+1}]")
    V_L, V_G, V_I, V_KO, V_QO, V_T0, V_T1, V_T2, V_T3, V_T4, V_T5 = 1, 2, 3, 4, 5, 6, 7, 8, 9, 10, 11
    V_M = 12; V_Q = 16; V_C = 20; V_OOB = 22; V_SML = 23; V_A = 24; V_ACC = 28; V_S = 32
    V_CNT = 34; V_X = 35; V_SO = 36; V_MM = 37; V_W1 = 38; V_W2 = 39
    V_R = 40
    V_XS = 56
    POOL0 = 64; SCR = 240
    free = list(range(POOL0, SCR, 4))
    slot = {}
    def alloc(tag):
        slot[tag] = free.pop(0); return slot[tag]
    def release(tag):
        free.append(slot.pop(tag))
    def r4(b): return f"v[{b}:{b+3}]"
    def r2(b): return f"v[{b}:{b+1}]"
    def bf16r(dst, src):
        a(f"v_cvt_pk_bf16_f32 v{dst}, v{src}, v{src}")
        a(f"v_and_b32 v{dst}, 0xffff0000, v{dst}")
    def wred_steps(op, regs):
        out = []
        for k in (8, 4, 2, 1):
            out.append([f"{op}_dpp v{r}, v{r}, v{r} row_ror:{k} {FULL}" for r in regs])
        out.append([f"{op}_dpp v{r}, v{r}, v{r} row_bcast:15 row_mask:0xa bank_mask:0xf" for r in regs])
        out.append([f"{op}_dpp v{r}, v{r}, v{r} row_bcast:31 row_mask:0xc bank_mask:0xf" for r in regs])
        return out
    def wred(op, regs, sdsts):
        for g in wred_steps(op, regs):
            for t in g: a(t)
        for r, s in zip(regs, sdsts):
            a(f"v_readlane_b32 s{s}, v{r}, 63")
    def ln_finish(vmean, vvar):
        a(f"v_fma_f32 v{vvar}, -v{vmean}, v{vmean}, v{vvar}")
        a(f"v_max_f32 v{vvar}, 0, v{vvar}")
        a(f"v_cvt_pk_bf16_f32 v{vvar}, v{vvar}, v{vvar}")
        a(f"v_cvt_pk_bf16_f32 v{vmean}, v{vmean}, v{vmean}")
        a(f"v_and_b32 v{vvar}, 0xffff0000, v{vvar}")
        a(f"v_add_f32 v{vvar}, 0x3727c5ac, v{vvar}")
        bf16r(vvar, vvar)
        a(f"v_sqrt_f32 v{vvar}, v{vvar}")
        a(f"v_and_b32 v{vmean}, 0xffff0000, v{vmean}")
        bf16r(vvar, vvar)
        a(f"v_rcp_f32 v{vvar}, v{vvar}")
    def tred4(Z):
        for i in range(2):
            a(f"v_add_f32_dpp v{Z+i}, v{Z+i}, v{Z+i} row_ror:8 row_mask:0xf bank_mask:0x3")
        for i in range(2):
            a(f"v_add_f32_dpp v{Z+i}, v{Z+i+2}, v{Z+i+2} row_ror:8 row_mask:0xf bank_mask:0xc")
        a(f"v_permlane16_swap_b32 v{Z}, v{Z+1}")
        a(f"v_add_f32 v{Z}, v{Z}, v{Z+1}")
        a(f"v_mov_b32 v{Z+1}, v{Z}")
        a(f"v_permlane32_swap_b32 v{Z}, v{Z+1}")
        a(f"v_add_f32 v{Z}, v{Z}, v{Z+1}")

    a.raw(HEADER.rstrip())
    a.raw(f"; @launch grid=(256,1,1) block=(512,1,1) lds={LDS_SIZE}")
    a.raw('.amdgcn_target "amdgcn-amd-amdhsa--gfx950"')
    a.raw(".text"); a.raw(f".globl {NAME}"); a.raw(".p2align 8"); a.raw(f".type {NAME},@function"); a.raw(f"{NAME}:")
    a("L_start:")
    a(f"s_load_dwordx2 s[{sK}:{sK+1}], s[0:1], 8")
    a(f"s_load_dwordx2 s[{sX}:{sX+1}], s[0:1], 0")
    a(f"s_load_dwordx2 s[{sQ}:{sQ+1}], s[0:1], 24")
    a("s_cmp_ge_u32 s2, 256")
    a("s_cbranch_scc1 L_done")
    stamp("start")
    a(f"s_and_b32 s{S_XG}, s2, 7")
    a(f"s_lshr_b32 s{S_J}, s2, 3")
    a(f"s_and_b32 s{S_T0}, s{S_J}, 3")
    a(f"s_lshl2_add_u32 s{S_HEAD}, s{S_XG}, s{S_T0}")
    a(f"s_lshr_b32 s{S_SPLIT}, s2, 5")
    a(f"s_lshl3_add_u32 s{S_SLOT}, s{S_HEAD}, s{S_SPLIT}")
    a(f"s_lshl_b32 s{S_OK}, s{S_SLOT}, 18")
    a(f"v_lshlrev_b32 v{V_KO}, 4, v0")
    a(f"s_mov_b32 s{sK+2}, 0x4000000")
    a(f"s_mov_b32 s{sK+3}, 0x20000")
    a(f"s_mov_b32 s{S_OV}, s{S_OK}")
    a("s_waitcnt lgkmcnt(0)")

    def ldK(i):
        b = alloc(("K", i))
        a(f"buffer_load_dwordx4 {r4(b)}, v{V_KO}, {srd(sK)}, s{S_OK} offen {polK}", tag=("K", i))
        if i < N - 1: a(f"s_addk_i32 s{S_OK}, 0x2000")
    def ldV(i):
        b = alloc(("V", i))
        a(f"buffer_load_dwordx4 {r4(b)}, v{V_KO}, {srd(sV)}, s{S_OV} offen {polK}", tag=("V", i))
        if i < N - 1: a(f"s_addk_i32 s{S_OV}, 0x2000")
    def ldQ(i):
        b = alloc(("Q", i))
        a(f"buffer_load_dwordx4 {r4(b)}, v{V_QO}, {srd(sQ)}, s{S_OQ} offen {polQ}", tag=("Q", i))
        if i < 17: a(f"s_add_u32 s{S_OQ}, s{S_OQ}, 0x40000")
    seq = [("K", i) for i in range(DS + c["kpre"])]
    ki = DS + c["kpre"]; qi = 0; pat = c["pat"]; p = 0
    while qi < 18:
        ch = pat[p % len(pat)]; p += 1
        if ch == "Q": seq.append(("Q", qi)); qi += 1
        elif ki < N: seq.append(("K", ki)); ki += 1
    while ki < N:
        seq.append(("K", ki)); ki += 1
    for i in range(N): seq.append(("V", i))
    issuers = {"K": ldK, "V": ldV, "Q": ldQ}
    nxt = [0]; landed = []; wtd = [0]; cur = [DS]
    def step(depth=None):
        d = cur[0] if depth is None else depth
        k = nxt[0]
        upto = min(k - d, len(seq) - 1)
        if upto >= wtd[0]:
            a.wait(seq[upto])
            while wtd[0] <= upto:
                landed.append(seq[wtd[0]]); wtd[0] += 1
        if k < len(seq):
            t = seq[k]; issuers[t[0]](t[1])
        nxt[0] += 1
    def boost():
        for u in range(c["boost"]): step(cur[0] + 1 + u)
    for _ in range(DS): step()
    a(f"s_load_dwordx2 s[{sV}:{sV+1}], s[0:1], 16")
    a(f"s_load_dwordx2 s[{sWS}:{sWS+1}], s[0:1], 88")
    a(f"s_load_dwordx2 s[{sD}:{sD+1}], s[0:1], 80")
    a("s_load_dwordx2 s[12:13], s[0:1], 32")
    a("s_load_dwordx8 s[16:23], s[0:1], 48")
    a(f"v_and_b32 v{V_L}, 63, v0")
    a(f"s_mov_b32 s{sX+2}, 1152"); a(f"s_mov_b32 s{sX+3}, 0x20000")
    a(f"v_lshlrev_b32 v{V_T5}, 3, v{V_L}")
    a(f"v_and_b32 v{V_I}, 15, v0")
    a(f"v_lshrrev_b32 v{V_T1}, 4, v0")
    for t in range(3):
        a(f"buffer_load_dwordx2 {r2(V_XS+2*t)}, v{V_T5}, {srd(sX)}, 0 offen offset:{512*t}", tag="xs")
    a(f"v_lshl_add_u32 v{V_T3}, v{V_I}, 5, v{V_T1}")
    a(f"v_lshlrev_b32 v{V_T3}, 1, v{V_T3}")
    a(f"buffer_load_ushort v{V_XS+6}, v{V_T3}, {srd(sX)}, 0 offen", tag="xc")
    a(f"buffer_load_ushort v{V_XS+7}, v{V_T3}, {srd(sX)}, 0 offen offset:1024", tag="xc")
    a(f"v_lshlrev_b32 v{V_QO}, 13, v{V_T1}")
    a(f"s_lshl_b32 s{S_OQ}, s{S_HEAD}, 8")
    a(f"v_lshl_add_u32 v{V_QO}, v{V_I}, 4, v{V_QO}")
    a(f"s_mov_b32 s{sQ+2}, {0 if c['qoob'] else 576*8192}"); a(f"s_mov_b32 s{sQ+3}, 0x20000")
    a(f"v_mov_b32 v{V_OOB}, {hex(OOB)}")
    a(f"v_lshrrev_b32 v{V_T0}, 6, v0")
    a(f"v_lshrrev_b32 v{V_G}, 4, v{V_L}")
    a(f"v_readfirstlane_b32 s{S_W}, v{V_T0}")
    if c["pfq"]:
        a(f"v_mad_u32_u24 v{V_T2}, v{V_T0}, 36, v{V_L}")
        a(f"v_lshrrev_b32 v{V_T3}, 4, v{V_T2}")
        a(f"v_and_b32 v{V_T2}, 15, v{V_T2}")
        a(f"v_lshlrev_b32 v{V_T3}, 13, v{V_T3}")
        a(f"v_lshl_add_u32 v{V_T2}, v{V_T2}, 6, v{V_T3}")
        a(f"v_cmp_gt_u32 vcc, 36, v{V_L}")
        a(f"s_mul_i32 s{S_T0}, s{S_J}, {18*8192}")
        a(f"s_lshl_b32 s{S_T1}, s{S_XG}, 10")
        a(f"v_cndmask_b32 v{V_T2}, v{V_OOB}, v{V_T2}, vcc")
        a(f"s_add_u32 s{S_T0}, s{S_T0}, s{S_T1}")
        a(f"buffer_load_dword v{SCR+4}, v{V_T2}, {srd(sQ)}, s{S_T0} offen", tag="pfq")
    if c["cpf"]:
        a("s_getpc_b64 s[4:5]")
        a("L_pc:")
        a(f"s_and_b32 s{S_T0}, s{S_J}, 1")
        a(f"s_lshl_b32 s{S_T0}, s{S_T0}, 13")
        a(f"v_add_u32 v{V_T2}, s{S_T0}, v{V_KO}")
        a(f"v_min_u32 v{V_T2}, L_end-L_pc-16, v{V_T2}")
        a(f"v_mov_b32 v{V_T3}, s5")
        a(f"v_add_co_u32 v{V_T2}, vcc, s4, v{V_T2}")
        a(f"v_addc_co_u32 v{V_T3}, vcc, 0, v{V_T3}, vcc")
        a(f"global_load_dwordx4 {r4(SCR)}, v[{V_T2}:{V_T3}], off", tag="cpf")
    a(f"v_and_b32 v{V_T0}, 1, v{V_L}")
    a(f"v_lshlrev_b32 v{V_T0}, 4, v{V_T0}")
    a(f"v_mov_b32 v{V_T1}, 0xffff")
    a(f"v_lshlrev_b32 v{V_T0}, v{V_T0}, v{V_T1}")
    a(f"v_bfe_u32 v{V_T1}, v{V_L}, 1, 2")
    for d in range(4):
        a(f"v_cmp_eq_u32 s[{4+2*(d&1)}:{5+2*(d&1)}], {d}, v{V_T1}")
        if d: a(f"v_cndmask_b32 v{V_M+d-1}, 0, v{V_T0}, s[{4+2*((d-1)&1)}:{5+2*((d-1)&1)}]")
    a(f"v_cndmask_b32 v{V_M+3}, 0, v{V_T0}, s[6:7]")
    for k in range(4):
        a(f"v_mov_b32 v{V_ACC+k}, 0")
    a(f"v_mov_b32 v{V_T0}, 0"); a(f"v_mov_b32 v{V_T1}, 0"); a(f"v_mov_b32 v{V_T2}, 0x3f803f80")
    if c["DSq"]:
        while cur[0] < c["DSq"]:
            cur[0] += 1; step()
    for _ in range(c["lnstep"]): step()
    a.wait("xc")
    for t in range(6):
        a(f"v_dot2c_f32_bf16 v{V_T0}, v{V_XS+t}, v{V_T2}")
        a(f"v_dot2c_f32_bf16 v{V_T1}, v{V_XS+t}, v{V_XS+t}")
    wred("v_add_f32", [V_T0, V_T1], [S_T0, S_T1])
    a(f"v_mov_b32 v{V_T1}, 0x3ae38e39")
    a(f"v_mul_f32 v{V_T0}, s{S_T0}, v{V_T1}")
    a(f"v_mul_f32 v{V_T1}, s{S_T1}, v{V_T1}")
    ln_finish(V_T0, V_T1)
    for k in range(2):
        a(f"v_lshlrev_b32 v{V_C+k}, 16, v{V_XS+6+k}")
    for k in range(2):
        a(f"v_sub_f32 v{V_C+k}, v{V_C+k}, v{V_T0}")
    for k in range(2):
        bf16r(V_C + k, V_C + k)
    for k in range(2):
        a(f"v_mul_f32 v{V_C+k}, v{V_C+k}, v{V_T1}")
    for k in range(2):
        a(f"v_cvt_pk_bf16_f32 v{V_C+k}, v{V_C+k}, v{V_C+k}")
    stamp("ln")
    def gemv_dpp(coef, i, tag):
        for d in range(4):
            a(f"v_and_b32_dpp v{V_A+d}, v{coef}, v{V_M+d} row_newbcast:{i} {FULL}")
        a.wait(tag)
        a(f"v_mfma_f32_16x16x32_bf16 {r4(V_ACC)}, {r4(V_A)}, {r4(slot[tag])}, {r4(V_ACC)}")
        release(tag)
    def clear_setup():
        a("s_waitcnt lgkmcnt(0)")
        for b, n in ((sV, 0x4000000), (sWS, WS_SIZE), (sD, 256)):
            a(f"s_mov_b32 s{b+2}, {hex(n)}")
            a(f"s_mov_b32 s{b+3}, 0x20000")
        a(f"s_mul_i32 s{S_T0}, s{S_XG}, 9")
        a(f"s_add_u32 s{S_T1}, s{S_T0}, s{S_J}")
        a(f"s_add_u32 s{S_T0}, s{S_T0}, s{S_T1}")
        a(f"s_sub_u32 s{S_T0}, s{S_T0}, 9")
        a(f"s_cmp_lt_u32 s{S_J}, 9")
        a(f"s_cselect_b32 s{S_IDX}, s{S_T1}, s{S_T0}")
        a(f"s_movk_i32 s{S_T0}, 2304")
        a(f"s_mov_b32 s{S_T1}, {WS_Z}")
        a(f"s_cselect_b32 s{S_T0}, 0x100, s{S_T0}")
        a(f"s_cselect_b32 s{S_T1}, {WS_Y}, s{S_T1}")
        a(f"s_cselect_b32 s{S_T2}, 16, 0x90")
        a(f"s_mul_i32 s{S_T0}, s{S_T0}, s{S_IDX}")
        a(f"s_add_u32 s{S_M}, s{S_T0}, s{S_T1}")
        a(f"s_cmp_lt_u32 s{S_J}, 27")
        a(f"s_cselect_b32 s{S_T2}, s{S_T2}, 0")
        a(f"v_add_u32 v{V_T0}, s{S_M}, v{V_KO}")
        if c["zt"]:
            a(f"v_lshrrev_b32 v{V_T1}, 1, v0")
            a(f"v_mul_u32_u24 v{V_T1}, 4608, v{V_T1}")
            a(f"v_and_b32 v{V_T2}, 1, v0")
            a(f"v_lshl_add_u32 v{V_T1}, v{V_T2}, 4, v{V_T1}")
            a(f"s_lshl_b32 s{S_T0}, s{S_IDX}, 5")
            a(f"s_add_u32 s{S_T0}, s{S_T0}, {WS_Z}")
            a(f"v_add_u32 v{V_T1}, s{S_T0}, v{V_T1}")
            a(f"s_cmp_lt_u32 s{S_J}, 9")
            a(f"s_cselect_b64 vcc, -1, 0")
            a(f"v_cndmask_b32 v{V_T0}, v{V_T1}, v{V_T0}, vcc")
        a(f"v_cmp_gt_u32 vcc, s{S_T2}, v0")
        a(f"s_lshl_b32 s{S_T0}, s{S_SLOT}, 9")
        a(f"v_cndmask_b32 v{V_T0}, v{V_OOB}, v{V_T0}, vcc")
        a(f"v_lshl_add_u32 v{V_T1}, v{V_L}, 4, s{S_T0}")
        a(f"s_lshl4_add_u32 s{S_T1}, s{S_SLOT}, {WS_ML}")
        a(f"v_mov_b32 v{V_SML}, s{S_T1}")
        a(f"v_cmp_eq_u32 vcc, {3*64+32}, v0")
        a(f"v_subrev_u32 v{V_T2}, {3*64}, v0")
        a(f"v_cndmask_b32 v{V_T0}, v{V_T0}, v{V_SML}, vcc")
        a(f"v_cndmask_b32 v{V_SML}, v{V_OOB}, v{V_SML}, vcc")
        a(f"v_cmp_gt_u32 vcc, 32, v{V_T2}")
        for k in range(4):
            a(f"v_mov_b32 v{V_R+k}, -1")
        a(f"v_cndmask_b32 v{V_T0}, v{V_T0}, v{V_T1}, vcc")
        if not c["noclr"]: a(f"buffer_store_dwordx4 {r4(V_R)}, v{V_T0}, {srd(sWS)}, 0 offen sc1", tag="clr")
        a(f"v_and_b32 v{V_T0}, 7, v{V_L}")
        a(f"v_bfe_u32 v{V_T1}, v{V_L}, 3, 1")
        a(f"v_lshl_add_u32 v{V_T0}, v{V_T0}, 1, v{V_T1}")
        a(f"v_bfe_u32 v{V_T1}, v{V_L}, 4, 1")
        a(f"v_lshl_add_u32 v{V_T0}, v{V_T0}, 1, v{V_T1}")
        a(f"v_lshlrev_b32 v{V_X}, 2, v{V_T0}")
        a(f"s_lshl_b32 s{S_T1}, s{S_W}, 7")
        a(f"s_add_u32 s{S_T0}, s{S_T0}, s{S_T1}")
        a(f"v_add_u32 v{V_T0}, s{S_T0}, v{V_X}")
        a(f"v_and_b32 v{V_T1}, 0x120, v0")
        a(f"v_cmp_eq_u32 vcc, 0, v{V_T1}")
        a(f"s_mov_b32 s{S_MA}, 0xaaaaaaaa"); a(f"s_mov_b32 s{S_MA+1}, 0xaaaaaaaa")
        a(f"v_cndmask_b32 v{V_SO}, v{V_OOB}, v{V_T0}, vcc")
        a(f"s_mov_b32 s{S_MC}, 0xcccccccc"); a(f"s_mov_b32 s{S_MC+1}, 0xcccccccc")
        a(f"v_and_b32 v{V_T0}, 1, v{V_G}")
        a(f"v_lshlrev_b32 v{V_T0}, 4, v{V_T0}")
        a(f"v_lshl_add_u32 v{V_T0}, v{V_I}, 5, v{V_T0}")
        a(f"s_lshl_b32 s{S_T0}, s{S_W}, 9")
        a(f"v_add_u32 v{V_W1}, s{S_T0}, v{V_T0}")
        a(f"s_lshl_b32 s{S_T1}, s{S_W}, 2")
        a(f"v_mov_b32 v{V_W2}, s{S_T1}")
        a(f"s_mov_b32 s{S_SPIN}, {c['spin']}")
    def signal():
        assert not a.pending("clr")
        a("s_barrier")
        a(f"v_cmp_eq_u32 vcc, 0, v0")
        a(f"s_and_b32 s{S_T0}, s2, 3")
        a(f"s_lshl_b32 s{S_T0}, s{S_T0}, 6")
        a(f"v_mov_b32 v{V_T2}, s{S_T0}")
        a(f"v_cndmask_b32 v{V_T1}, v{V_OOB}, v{V_T2}, vcc")
        a(f"v_mov_b32 v{V_T2}, 1")
        if not c["nosig"]: a(f"buffer_atomic_add v{V_T2}, v{V_T1}, {srd(sD)}, 0 offen sc1", tag="sig")
    qdone = 0; ns = 0
    while qdone < 18:
        while ("Q", qdone) in landed:
            landed.remove(("Q", qdone))
            gemv_dpp(V_C + (qdone >> 4), qdone & 15, ("Q", qdone)); qdone += 1
        if ns == c["clrstep"]: clear_setup()
        if ns == c["clrstep"] + cur[0] + 1: signal()
        ns += 1
        if qdone < 18: step()
    assert ns > c["clrstep"] + cur[0] + 1
    boost()
    a(f"ds_write_b128 v{V_W1}, {r4(V_ACC)} offset:{L_QP}")
    for k in range(16):
        a(f"v_mov_b32 v{V_R+k}, 0")
    a("s_waitcnt lgkmcnt(0)")
    a("s_barrier")
    a(f"s_cmp_lg_u32 s{S_W}, 0")
    a("s_cbranch_scc1 L_q2")
    a(f"v_lshlrev_b32 v{V_T0}, 3, v{V_L}")
    TT = SCR
    for u in range(8):
        a(f"ds_read_b64 {r2(TT+2*u)}, v{V_T0} offset:{L_QP+512*u}")
    a("s_waitcnt lgkmcnt(0)")
    st = 1
    while st < 8:
        for u in range(0, 8, 2 * st):
            for k in range(2):
                a(f"v_add_f32 v{TT+2*u+k}, v{TT+2*u+k}, v{TT+2*(u+st)+k}")
        st *= 2
    a(f"v_cvt_pk_bf16_f32 v{V_T1}, v{TT}, v{TT+1}")
    a(f"v_lshlrev_b32 v{V_T0}, 2, v{V_L}")
    a(f"ds_write_b32 v{V_T0}, v{V_T1} offset:{L_QB}")
    a("s_waitcnt lgkmcnt(0)")
    a("L_q2:")
    a("s_barrier")
    a(f"v_lshlrev_b32 v{V_T0}, 4, v{V_I}")
    a(f"ds_read_b128 {r4(V_Q)}, v{V_T0} offset:{L_QB}")
    a("s_waitcnt lgkmcnt(0)")
    stamp("q")
    cur[0] = DS
    def treduce(dst):
        R = V_R
        for i in range(8):
            a(f"v_add_f32_dpp v{R+i}, v{R+i}, v{R+i} row_ror:8 row_mask:0xf bank_mask:0x3")
        for i in range(8):
            a(f"v_add_f32_dpp v{R+i}, v{R+i+8}, v{R+i+8} row_ror:8 row_mask:0xf bank_mask:0xc")
        for i in range(4):
            a(f"v_add_f32_dpp v{R+i}, v{R+i}, v{R+i} row_shl:4 row_mask:0xf bank_mask:0x5")
        for i in range(4):
            a(f"v_add_f32_dpp v{R+i}, v{R+i+4}, v{R+i+4} row_shr:4 row_mask:0xf bank_mask:0xa")
        for i in range(2):
            a(f"v_cndmask_b32 v{R+8+i}, v{R+i}, v{R+i+2}, s[{S_MC}:{S_MC+1}]")
            a(f"v_cndmask_b32 v{R+10+i}, v{R+i+2}, v{R+i}, s[{S_MC}:{S_MC+1}]")
        for i in range(2):
            a(f"v_add_f32_dpp v{R+i}, v{R+10+i}, v{R+8+i} quad_perm:[2,3,0,1] {FULL}")
        a(f"v_cndmask_b32 v{R+8}, v{R}, v{R+1}, s[{S_MA}:{S_MA+1}]")
        a(f"v_cndmask_b32 v{R+9}, v{R+1}, v{R}, s[{S_MA}:{S_MA+1}]")
        a(f"v_add_f32_dpp v{dst}, v{R+9}, v{R+8} quad_perm:[1,0,3,2] {FULL}")
    kdone = 0
    while kdone < N:
        nb = 0
        while ("K", kdone) in landed and nb < c["B"]:
            i = kdone; landed.remove(("K", i)); b = slot[("K", i)]
            for d in range(4):
                a(f"v_dot2c_f32_bf16 v{V_R+(i&15)}, v{b+d}, v{V_Q+d}")
            release(("K", i))
            if (i & 15) == 15:
                if i == N - 1: boost()
                treduce(V_S + (i >> 4))
                if i != N - 1:
                    for k in range(16):
                        a(f"v_mov_b32 v{V_R+k}, 0")
            kdone += 1; nb += 1
        if kdone < N: step()
    stamp("K")
    a(f"s_mov_b32 s{S_T1}, {hex(SCALE)}")
    for k in range(2):
        bf16r(V_S + k, V_S + k)
    for k in range(2):
        a(f"v_mul_f32 v{V_S+k}, s{S_T1}, v{V_S+k}")
    for k in range(2):
        bf16r(V_S + k, V_S + k)
    a(f"v_max_f32 v{V_T0}, v{V_S}, v{V_S+1}")
    wred("v_max_f32", [V_T0], [S_T0])
    a(f"v_mov_b32 v{V_T0}, s{S_T0}")
    a(f"ds_write_b32 v{V_W2}, v{V_T0} offset:{L_MX}")
    a("s_waitcnt lgkmcnt(0)")
    a("s_barrier")
    a(f"v_mov_b32 v{V_T0}, 0")
    a(f"ds_read_b128 {r4(V_R)}, v{V_T0} offset:{L_MX}")
    a(f"ds_read_b128 {r4(V_R+4)}, v{V_T0} offset:{L_MX+16}")
    a("s_waitcnt lgkmcnt(0)")
    a(f"v_max3_f32 v{V_MM}, v{V_R}, v{V_R+1}, v{V_R+2}")
    a(f"v_max3_f32 v{V_MM}, v{V_MM}, v{V_R+3}, v{V_R+4}")
    a(f"v_max3_f32 v{V_MM}, v{V_MM}, v{V_R+5}, v{V_R+6}")
    a(f"v_max_f32 v{V_MM}, v{V_MM}, v{V_R+7}")
    a(f"s_mov_b32 s{S_T1}, {hex(LOG2E)}")
    for k in range(2):
        a(f"v_sub_f32 v{V_S+k}, v{V_S+k}, v{V_MM}")
    for k in range(2):
        a(f"v_mul_f32 v{V_S+k}, s{S_T1}, v{V_S+k}")
    for k in range(2):
        a(f"v_exp_f32 v{V_S+k}, v{V_S+k}")
    for k in range(4):
        a(f"v_mov_b32 v{V_ACC+k}, 0")
    for k in range(2):
        a(f"v_cvt_pk_bf16_f32 v{V_C+k}, v{V_S+k}, v{V_S+k}")
    a(f"v_add_f32 v{V_T0}, v{V_S}, v{V_S+1}")
    wred("v_add_f32", [V_T0], [S_T0])
    a(f"v_mov_b32 v{V_T0}, s{S_T0}")
    a(f"ds_write_b32 v{V_W2}, v{V_T0} offset:{L_LW}")
    VPR = V_S
    a(f"v_lshrrev_b32 v{V_T0}, 3, v{V_L}")
    a(f"v_lshlrev_b32 v{V_T0}, 9, v{V_T0}")
    a(f"v_and_b32 v{V_T1}, 7, v{V_L}")
    a(f"v_lshl_add_u32 v{V_T0}, v{V_T1}, 4, v{V_T0}")
    a(f"s_and_b32 s{S_T0}, s{S_W}, 3")
    a(f"s_lshl_b32 s{S_T0}, s{S_T0}, 7")
    a(f"v_add_u32 v{VPR}, s{S_T0}, v{V_T0}")
    vdone = [0]
    def vphase(extra, upto):
        def eat(i):
            gemv_dpp(V_C + (i >> 4), i & 15, ("V", i))
            for f in extra.get(i, []): f()
        while vdone[0] < upto:
            nb = 0
            while vdone[0] < upto and ("V", vdone[0]) in landed and nb < c["B"]:
                landed.remove(("V", vdone[0])); eat(vdone[0]); vdone[0] += 1; nb += 1
            if vdone[0] < upto:
                if nxt[0] < len(seq): step()
                else:
                    eat(vdone[0]); vdone[0] += 1
    def flush_seq():
        while nxt[0] < len(seq):
            t = seq[nxt[0]]; issuers[t[0]](t[1]); nxt[0] += 1
    def ml_publish():
        if c["boost"]: step(DS + 1)
        a("s_waitcnt lgkmcnt(0)")
        a("s_barrier")
        a(f"v_mov_b32 v{V_T0}, 0")
        a(f"ds_read_b128 {r4(SCR)}, v{V_T0} offset:{L_LW}")
        a(f"ds_read_b128 {r4(SCR+4)}, v{V_T0} offset:{L_LW+16}")
        a(f"v_min_u32 v{V_T2}, -2, v{V_MM}")
        a("s_waitcnt lgkmcnt(0)")
        for k in range(4):
            a(f"v_add_f32 v{SCR+k}, v{SCR+k}, v{SCR+4+k}")
        a(f"v_add_f32 v{SCR}, v{SCR}, v{SCR+1}")
        a(f"v_add_f32 v{SCR+2}, v{SCR+2}, v{SCR+3}")
        a(f"v_add_f32 v{V_T3}, v{SCR}, v{SCR+2}")
        a(f"v_min_u32 v{V_T3}, -2, v{V_T3}")
        a(f"buffer_store_dwordx2 {r2(V_T2)}, v{V_SML}, {srd(sWS)}, 0 offen sc1", tag="mlp")
    def publish(lbl):
        stamp("V")
        a(f"ds_write_b128 v{V_W1}, {r4(V_ACC)} offset:{L_OP}")
        a("s_waitcnt lgkmcnt(0)")
        a("s_barrier")
        a(f"ds_read_b128 {r4(SCR)}, v{VPR} offset:{L_OP}")
        a("s_waitcnt lgkmcnt(0)")
        tred4(SCR)
        a(f"v_min_u32 v{SCR}, -2, v{SCR}")
        a(f"buffer_store_dword v{SCR}, v{V_SO}, {srd(sWS)}, 0 offen sc1", tag="pub")
        stamp("pub")
    def ld_cnt():
        a(f"v_and_b32 v{V_T0}, 3, v{V_L}")
        a(f"v_lshlrev_b32 v{V_T0}, 6, v{V_T0}")
        a(f"buffer_load_dword v{V_CNT}, v{V_T0}, {srd(sD)}, 0 offen sc1", tag="cnt")
    def check_cnt(lbl):
        a.wait("cnt")
        a(f"L_cnt{lbl}:")
        a(f"v_cmp_gt_u32 vcc, 64, v{V_CNT}")
        a(f"s_cbranch_vccz L_cntok{lbl}")
        a(f"v_and_b32 v{V_T0}, 3, v{V_L}")
        a(f"v_lshlrev_b32 v{V_T0}, 6, v{V_T0}")
        a.raw(f"buffer_load_dword v{V_CNT}, v{V_T0}, {srd(sD)}, 0 offen sc1")
        a("s_waitcnt vmcnt(0)")
        a(f"s_sub_u32 s{S_SPIN}, s{S_SPIN}, 1")
        a(f"s_cbranch_scc0 L_cnt{lbl}")
        a(f"L_cntok{lbl}:")
    def chk(regs, t=V_T0):
        rs = list(regs)
        if len(rs) == 1:
            a(f"v_cmp_eq_u32 vcc, -1, v{rs[0]}")
            return
        if len(rs) % 2 == 0:
            a(f"v_max_u32 v{t}, v{rs[0]}, v{rs[1]}"); rs = rs[2:]
        else:
            a(f"v_max3_u32 v{t}, v{rs[0]}, v{rs[1]}, v{rs[2]}"); rs = rs[3:]
        while rs:
            a(f"v_max3_u32 v{t}, v{t}, v{rs[0]}, v{rs[1]}"); rs = rs[2:]
        a(f"v_cmp_eq_u32 vcc, -1, v{t}")
    def poll(lbl, loads, regs, first_issued=False):
        if first_issued:
            a(f"s_branch L_pollw{lbl}")
        a(f"L_poll{lbl}:")
        for l in loads: a(l)
        a(f"L_pollw{lbl}:")
        a.wait_all()
        chk(regs)
        a(f"s_cbranch_vccz L_pollok{lbl}")
        if c["sl"].get(lbl): a(f"s_sleep {c['sl'][lbl]}")
        a(f"s_sub_u32 s{S_SPIN}, s{S_SPIN}, 1")
        a(f"s_cbranch_scc0 L_poll{lbl}")
        a(f"L_pollok{lbl}:")
    def ppoll(lbl, mk, sets, reduce, first_issued=False):
        k = len(sets); n = len(mk(sets[0]))
        for i, rs in enumerate(sets):
            if i == 0 and first_issued: continue
            if i < k - 1 or k == 1:
                for l in mk(rs): a(l)
        if k == 1:
            poll(lbl, mk(sets[0]), sets[0], first_issued=True)
            reduce(sets[0]); return
        a(f"L_poll{lbl}:")
        for i in range(k):
            for l in mk(sets[(i + k - 1) % k]): a.raw(l)
            a(f"s_waitcnt vmcnt({n*(k-1)})")
            chk(sets[i])
            a(f"s_cbranch_vccz L_ok{lbl}_{i}")
        a(f"s_sub_u32 s{S_SPIN}, s{S_SPIN}, 1")
        a(f"s_cbranch_scc0 L_poll{lbl}")
        for i in reversed(range(k)):
            a(f"L_ok{lbl}_{i}:")
            reduce(sets[i])
            if i: a(f"s_branch L_pollok{lbl}")
        a(f"L_pollok{lbl}:")
        a.vm = []
    def spoll(lbl, loads, regsets, first_issued=False):
        allr = [r for rs in regsets for r in rs]
        if not first_issued:
            for l in loads: a(l)
        a(f"L_poll{lbl}:")
        a.wait_all()
        chk(allr)
        a(f"s_cbranch_vccz L_pollok{lbl}")
        for u, (l, rs) in enumerate(zip(loads, regsets)):
            chk(rs)
            a(f"s_cbranch_vccz L_sk{lbl}_{u}")
            a.raw(l)
            a(f"L_sk{lbl}_{u}:")
        a(f"s_sub_u32 s{S_SPIN}, s{S_SPIN}, 1")
        a(f"s_cbranch_scc0 L_poll{lbl}")
        a("s_waitcnt vmcnt(0)")
        a(f"L_pollok{lbl}:")
    def gate(lbl, load, reg, maxbad, sleep):
        a(f"L_gate{lbl}:")
        a(load)
        a.wait_all()
        a(f"v_cmp_eq_u32 vcc, -1, v{reg}")
        a(f"s_bcnt1_i32_b64 s{S_T0}, vcc")
        a(f"s_cmp_le_u32 s{S_T0}, {maxbad}")
        a(f"s_cbranch_scc1 L_gateok{lbl}")
        if sleep: a(f"s_sleep {sleep}")
        a(f"s_sub_u32 s{S_SPIN}, s{S_SPIN}, 1")
        a(f"s_cbranch_scc0 L_gate{lbl}")
        a(f"L_gateok{lbl}:")
    def finish(role):
        if c["stamps"]:
            STAMPS[role] = list(stn)
            a("s_waitcnt lgkmcnt(0)")
            a(f"s_lshl_b32 s{S_T0}, s2, 3"); a(f"s_add_u32 s{S_T0}, s{S_T0}, s{S_W}"); a(f"s_lshl_b32 s{S_T0}, s{S_T0}, 7")
            a(f"s_add_u32 s{S_T0}, s{S_T0}, {WS_ST}")
            a(f"v_mov_b32 v{V_T0}, s{S_T0}")
            a(f"v_cmp_eq_u32 vcc, 0, v{V_L}")
            a(f"s_and_saveexec_b64 s[{S_E}:{S_E+1}], vcc")
            for k in range(len(stn)):
                a(f"v_mov_b32 v{V_T2}, s{S_STAMP+2*k}"); a(f"v_mov_b32 v{V_T2+1}, s{S_STAMP+2*k+1}")
                a(f"buffer_store_dwordx2 {r2(V_T2)}, v{V_T0}, {srd(sWS)}, 0 offen offset:{8*k}")
            a(f"v_mov_b32 v{V_T2}, s{S_SPIN}")
            a(f"buffer_store_dword v{V_T2}, v{V_T0}, {srd(sWS)}, 0 offen offset:120")
        a("s_endpgm")
    MT = c["mltile"]; RD = c["RD"]
    fsz = 0 if c["foob"] else 576 * 9216
    sWO, sW1, sW2w, sOUT = 12, sW, sW2, 24
    a(f"s_mov_b32 s14, {0 if c['ooob'] else 4096*1152}"); a(f"s_mov_b32 s15, 0x20000")
    a(f"s_mov_b32 s{sW1}, s16"); a(f"s_mov_b32 s{sW1+1}, s17"); a(f"s_mov_b32 s{sW1+2}, {fsz}"); a(f"s_mov_b32 s{sW1+3}, 0x20000")
    a(f"s_mov_b32 s{sW3}, s18"); a(f"s_mov_b32 s{sW3+1}, s19"); a(f"s_mov_b32 s{sW3+2}, {fsz}"); a(f"s_mov_b32 s{sW3+3}, 0x20000")
    a(f"s_mov_b32 s{sW2}, s20"); a(f"s_mov_b32 s{sW2+1}, s21"); a(f"s_mov_b32 s{sW2+2}, {0 if c['foob'] else 4608*1152}"); a(f"s_mov_b32 s{sW2+3}, 0x20000")
    a(f"s_mov_b32 s{sOUT}, s22"); a(f"s_mov_b32 s{sOUT+1}, s23"); a(f"s_mov_b32 s{sOUT+2}, 1152"); a(f"s_mov_b32 s{sOUT+3}, 0x20000")
    VPF1, VPF2 = V_R + 14, V_R + 15
    a(f"s_mul_i32 s{S_T0}, s{S_W}, 41")
    a(f"v_add_u32 v{V_T0}, s{S_T0}, v{V_L}")
    a(f"v_cmp_gt_u32 vcc, 41, v{V_L}")
    a(f"v_cndmask_b32 v{V_T0}, v{V_OOB}, v{V_T0}, vcc")
    a(f"v_cmp_gt_u32 vcc, 324, v{V_T0}")
    a(f"v_mul_u32_u24 v{V_T1}, 3641, v{V_T0}")
    a(f"v_lshrrev_b32 v{V_T1}, 16, v{V_T1}")
    a(f"v_mul_u32_u24 v{V_T1}, {9216-1152}, v{V_T1}")
    a(f"v_lshlrev_b32 v{V_T0}, 6, v{V_T0}")
    a(f"v_add_u32 v{V_T1}, v{V_T1}, v{V_T0}")
    a(f"v_cndmask_b32 v{VPF1}, v{V_OOB}, v{V_T1}, vcc")
    a(f"v_cndmask_b32 v{VPF2}, v{V_OOB}, v{V_T0}, vcc")
    if c["pfstride"] == 128:
        a(f"v_and_b32 v{V_T0}, 64, v{V_T0}")
        a(f"v_cmp_eq_u32 vcc, 0, v{V_T0}")
        a(f"v_cndmask_b32 v{VPF1}, v{V_OOB}, v{VPF1}, vcc")
        a(f"v_cndmask_b32 v{VPF2}, v{V_OOB}, v{VPF2}, vcc")
    def ldP(t):
        if t in (0, 1):
            a(f"s_mul_i32 s{S_T0}, s{S_J}, {18*9216}")
            a(f"s_mul_i32 s{S_T1}, s{S_XG}, 1152")
            a(f"s_add_u32 s{S_T0}, s{S_T0}, s{S_T1}")
            a(f"buffer_load_dword v{SCR+8+t}, v{VPF1}, {srd(sW1 if t == 0 else sW3)}, s{S_T0} offen", tag=("P", t))
        elif t == 2:
            a(f"s_lshl5_dummy" if False else f"s_lshl_b32 s{S_T0}, s{S_XG}, 5")
            a(f"s_add_u32 s{S_T0}, s{S_T0}, s{S_J}")
            a(f"s_mul_i32 s{S_T0}, s{S_T0}, 18432")
            a(f"v_cmp_gt_u32 vcc, 18432, v{VPF2}")
            a(f"v_cndmask_b32 v{V_T0}, v{V_OOB}, v{VPF2}, vcc")
            a(f"buffer_load_dword v{SCR+8+t}, v{V_T0}, {srd(sWO)}, s{S_T0} offen", tag=("P", t))
        else:
            a(f"s_lshl_b32 s{S_T0}, s{S_XG}, 5")
            a(f"s_add_u32 s{S_T0}, s{S_T0}, s{S_J}")
            a(f"s_mul_i32 s{S_T0}, s{S_T0}, 20736")
            a(f"buffer_load_dword v{SCR+8+t}, v{VPF2}, {srd(sW2)}, s{S_T0} offen", tag=("P", t))
    issuers["P"] = ldP
    pl = ([2, 0, 1] if c["pfw"] else []) + ([3] if c["pf2"] else [])
    for n_, t in enumerate(pl):
        seq.insert(max(nxt[0], seq.index(("V", c["pfat"] + c["pfgap"] * n_))), ("P", t))
    exm = {MT: [ml_publish], MT - 3: [ld_cnt], RD - 1: [lambda: check_cnt("C")]}
    if c["nosig"]: exm.pop(MT - 3); exm.pop(RD - 1)
    if c["noml"]: exm.pop(MT)
    vphase(exm, RD)
    a(f"s_cmp_lt_u32 s{S_J}, 9")
    a("s_cbranch_scc1 L_roleO")
    a(f"s_cmp_lt_u32 s{S_J}, 27")
    a("s_cbranch_scc1 L_roleF")
    st0 = (list(a.vm), list(free), dict(slot), nxt[0], list(stn), list(landed), list(seq), vdone[0], wtd[0])
    def restore():
        a.vm = list(st0[0]); free[:] = st0[1]; slot.clear(); slot.update(st0[2]); nxt[0] = st0[3]; stn[:] = st0[4]
        landed[:] = st0[5]; seq[:] = st0[6]; vdone[0] = st0[7]; wtd[0] = st0[8]

    vphase({}, N)
    publish("N")
    finish("N")

    restore()
    a("L_roleO:")
    VO = V_R; VP = V_R + 1; VML = V_R + 2; VY = V_R + 3; VZ = V_R + 4; VOUT = V_R + 5; VYS = V_R + 6; VZ4 = V_R + 7
    VCW = V_R + 8; VCR = V_R + 9; VYW = V_R + 10; VYR = V_R + 11
    S_VAL = S_MA
    a(f"v_and_b32 v{V_T0}, 0x1f8, v0")
    a(f"v_lshlrev_b32 v{VCR}, 2, v{V_T0}")
    a(f"s_lshl_b32 s{S_T0}, s{S_XG}, 9")
    a(f"v_add_u32 v{V_T0}, s{S_T0}, v{V_T0}")
    a(f"v_mul_u32_u24 v{V_T0}, 1152, v{V_T0}")
    a(f"v_and_b32 v{V_T1}, 7, v{V_L}")
    a(f"v_lshl_add_u32 v{VO}, v{V_T1}, 4, v{V_T0}")
    a(f"s_lshl_b32 s{S_OQ}, s{S_J}, 7")
    def ldO(t):
        b = alloc(("O", t))
        a(f"buffer_load_dwordx4 {r4(b)}, v{VO}, {srd(sWO)}, s{S_OQ} offen {polW}", tag=("O", t))
        a(f"s_addk_i32 s{S_OQ}, 1152")
    issuers["O"] = ldO
    for t in range(c["nOpre"]):
        seq.append(("O", t))
    def o_setup():
        a(f"s_lshr_b32 s{S_T0}, s{S_W}, 1")
        a(f"s_lshl2_add_u32 s{S_T0}, s{S_XG}, s{S_T0}")
        a(f"s_lshl_b32 s{S_T1}, s{S_T0}, 12")
        a(f"v_and_b32 v{V_T0}, 127, v0")
        a(f"v_lshl_add_u32 v{VP}, v{V_T0}, 2, s{S_T1}")
        a(f"s_lshl_b32 s{S_T1}, s{S_T0}, 7")
        a(f"s_add_u32 s{S_T1}, s{S_T1}, {WS_ML}")
        a(f"v_and_b32 v{V_T0}, 7, v{V_L}")
        a(f"v_lshl_add_u32 v{VML}, v{V_T0}, 4, s{S_T1}")
        a(f"v_bfe_u32 v{V_T1}, v{V_L}, 3, 1")
        a(f"v_lshl_add_u32 v{VML}, v{V_T1}, 2, v{VML}")
        a(f"v_lshlrev_b32 v{VCW}, 2, v0")
        a(f"v_lshrrev_b32 v{V_T1}, 3, v{V_I}")
        a(f"v_lshrrev_b32 v{V_T2}, 1, v{V_G}")
        a(f"v_cmp_eq_u32 s[{S_VAL}:{S_VAL+1}], v{V_T1}, v{V_T2}")
        a(f"v_lshrrev_b32 v{V_T1}, 3, v{V_L}")
        a(f"v_lshlrev_b32 v{V_T1}, 8, v{V_T1}")
        a(f"v_lshl_add_u32 v{V_T1}, v{V_T0}, 4, v{V_T1}")
        a(f"s_and_b32 s{S_T0}, s{S_W}, 1")
        a(f"s_lshl_b32 s{S_T0}, s{S_T0}, 7")
        a(f"v_add_u32 v{VYR}, s{S_T0}, v{V_T1}")
        a(f"s_add_u32 s{S_T0}, s{S_T0}, s{S_M}")
        a(f"v_add_u32 v{V_T1}, s{S_T0}, v{V_X}")
        a(f"v_and_b32 v{V_T2}, 0x1a0, v0")
        a(f"v_cmp_eq_u32 vcc, 0, v{V_T2}")
        a(f"v_cndmask_b32 v{VYS}, v{V_OOB}, v{V_T1}, vcc")
        a(f"v_and_b32 v{V_T0}, 1, v{V_L}")
        a(f"v_bfe_u32 v{V_T1}, v{V_L}, 3, 1")
        a(f"v_bfe_u32 v{V_T2}, v{V_L}, 2, 1")
        a(f"v_lshl_add_u32 v{V_T1}, v{V_T1}, 1, v{V_T2}")
        a(f"v_lshl_add_u32 v{V_T0}, v{V_T0}, 2, v{V_T1}")
        a(f"s_lshl_b32 s{S_T0}, s{S_IDX}, 3")
        a(f"v_add_u32 v{V_T0}, s{S_T0}, v{V_T0}")
        a(f"v_lshlrev_b32 v{VOUT}, 1, v{V_T0}")
        a(f"buffer_load_ushort v{V_X}, v{VOUT}, {srd(sX)}, 0 offen", tag="xr")
        a(f"v_bfe_u32 v{V_T1}, v{V_L}, 1, 1")
        a(f"v_lshl_add_u32 v{V_T1}, v{V_G}, 1, v{V_T1}")
        a(f"v_mul_u32_u24 v{V_T1}, 2304, v{V_T1}")
        a(f"v_lshl_add_u32 v{V_T1}, v{V_T0}, 2, v{V_T1}")
        a(f"v_add_u32 v{VY}, {WS_Y}, v{V_T1}")
        if c["zt"]:
            a(f"v_lshlrev_b32 v{V_T0}, 4, v{V_L}")
            a(f"s_mul_i32 s{S_T0}, s{S_IDX}, 4608")
        else:
            a(f"v_lshrrev_b32 v{V_T0}, 1, v{V_L}")
            a(f"v_mul_u32_u24 v{V_T0}, 2304, v{V_T0}")
            a(f"v_and_b32 v{V_T1}, 1, v{V_L}")
            a(f"v_lshl_add_u32 v{V_T0}, v{V_T1}, 4, v{V_T0}")
            a(f"s_lshl_b32 s{S_T0}, s{S_IDX}, 5")
        a(f"s_add_u32 s{S_T0}, s{S_T0}, {WS_Z}")
        a(f"v_add_u32 v{VZ}, s{S_T0}, v{V_T0}")
        a(f"v_cmp_gt_u32 vcc, 32, v{V_L}")
        a(f"v_and_b32 v{V_T0}, 0x32, v{V_L}")
        a(f"v_cndmask_b32 v{VZ4}, v{V_OOB}, v{VZ}, vcc")
        a(f"v_cmp_eq_u32 vcc, 0, v{V_T0}")
        zs = 1024 if c["zt"] else 32 * 2304
        a(f"s_mov_b32 s4, {zs}"); a(f"s_mov_b32 s5, {2*zs}"); a(f"s_mov_b32 s6, {3*zs}"); a(f"s_mov_b32 s7, {4*zs}")
        a(f"v_cndmask_b32 v{VOUT}, v{V_OOB}, v{VOUT}, vcc")
    vphase({RD: [o_setup]}, N)
    publish("O")
    flush_seq()
    for t in range(c["nOpre"], 8): ldO(t)
    P = [alloc(("p", u)) for u in range(3)]
    regs = [P[0] + k for k in range(4)] + [P[1] + k for k in range(4)]
    sets = []
    for q_ in range(c["k1"]):
        b0, b1 = alloc(("ps", q_, 0)), alloc(("ps", q_, 1))
        sets.append([b0 + k for k in range(4)] + [b1 + k for k in range(4)])
    mk1 = lambda rs: [f"buffer_load_dword v{rs[s_]}, v{VP}, {srd(sWS)}, 0 offen offset:{512*s_} sc1" for s_ in range(8)]
    Mv, Lv = P[2], P[2] + 1
    mlload = f"buffer_load_dword v{Mv}, v{VML}, {srd(sWS)}, 0 offen sc1"
    a("L_mlp:")
    a(mlload, tag="ml")
    for l in mk1(sets[0]): a(l)
    a.wait("ml")
    chk([Mv])
    a("s_cbranch_vccz L_mlok")
    a("s_waitcnt vmcnt(0)")
    a(f"s_sub_u32 s{S_SPIN}, s{S_SPIN}, 1")
    a("s_cbranch_scc0 L_mlp")
    a("L_mlok:")
    a(f"v_mov_b32_dpp v{Lv}, v{Mv} row_ror:8 {FULL}")
    WT = V_T4
    a(f"v_max_f32_dpp v{WT}, v{Mv}, v{Mv} quad_perm:[1,0,3,2] {FULL}")
    a(f"v_max_f32_dpp v{WT}, v{WT}, v{WT} quad_perm:[2,3,0,1] {FULL}")
    a(f"v_max_f32_dpp v{WT}, v{WT}, v{WT} row_half_mirror {FULL}")
    a(f"s_mov_b32 s{S_T1}, {hex(LOG2E)}")
    a(f"v_sub_f32 v{WT}, v{Mv}, v{WT}")
    a(f"v_mul_f32 v{WT}, s{S_T1}, v{WT}")
    a(f"v_exp_f32 v{WT}, v{WT}")
    for k in range(4):
        a(f"v_mov_b32 v{V_ACC+k}, 0")
    a(f"v_mul_f32 v{V_T1}, v{WT}, v{Lv}")
    a(f"v_add_f32_dpp v{V_T1}, v{V_T1}, v{V_T1} quad_perm:[1,0,3,2] {FULL}")
    a(f"v_add_f32_dpp v{V_T1}, v{V_T1}, v{V_T1} quad_perm:[2,3,0,1] {FULL}")
    a(f"v_add_f32_dpp v{V_T1}, v{V_T1}, v{V_T1} row_half_mirror {FULL}")
    a(f"v_rcp_f32 v{V_T1}, v{V_T1}")
    a(f"v_mul_f32 v{WT}, v{WT}, v{V_T1}")
    def red1(rs):
        a(f"v_mul_f32_dpp v{V_T1}, v{WT}, v{rs[0]} row_newbcast:0 {FULL}")
        for s_ in range(1, 8):
            a(f"v_fmac_f32_dpp v{V_T1}, v{WT}, v{rs[s_]} row_newbcast:{s_} {FULL}")
    if c["sel1"]:
        spoll("O1", mk1(sets[0]), [[r] for r in sets[0]], first_issued=True); red1(sets[0])
    else:
        ppoll("O1", mk1, sets, red1, first_issued=True)
    stamp("got1")
    a(f"v_cvt_pk_bf16_f32 v{V_T1}, v{V_T1}, v{V_T1}")
    a(f"ds_write_b32 v{VCW}, v{V_T1} offset:{L_OC}")
    a(f"ds_read_b128 {r4(P[0])}, v{VCR} offset:{L_OC}")
    a(f"ds_read_b128 {r4(P[1])}, v{VCR} offset:{L_OC+16}")
    a("s_waitcnt lgkmcnt(0)")
    A2 = [V_A, SCR]
    for t in range(8):
        A = A2[t & 1]
        for d in range(4):
            a(f"v_and_b32 v{A+d}, v{regs[t]}, v{V_M+d}")
        if t: a(f"v_mfma_f32_16x16x32_bf16 {r4(V_ACC)}, {r4(A2[(t-1)&1])}, {r4(slot[('O', t-1)])}, {r4(V_ACC)}")
    a(f"v_mfma_f32_16x16x32_bf16 {r4(V_ACC)}, {r4(A2[1])}, {r4(slot[('O', 7)])}, {r4(V_ACC)}")
    a(f"s_mov_b64 exec, s[{S_VAL}:{S_VAL+1}]")
    a(f"ds_write_b128 v{V_W1}, {r4(V_ACC)} offset:{L_YP}")
    a(f"s_mov_b64 exec, -1")
    a(f"s_cmp_gt_u32 s{S_W}, 2")
    a("s_waitcnt lgkmcnt(0)")
    a("s_barrier")
    a("s_cbranch_scc1 L_Oend")
    a(f"s_cmp_eq_u32 s{S_W}, 2")
    a("s_cbranch_scc1 L_R")
    a(f"ds_read_b128 {r4(SCR)}, v{VYR} offset:{L_YP}")
    a(f"ds_read_b128 {r4(SCR+4)}, v{VYR} offset:{L_YP+2048}")
    a("s_waitcnt lgkmcnt(0)")
    for k in range(4):
        a(f"v_add_f32 v{SCR+k}, v{SCR+k}, v{SCR+4+k}")
    tred4(SCR)
    a(f"v_min_u32 v{SCR}, -2, v{SCR}")
    a(f"buffer_store_dword v{SCR}, v{VYS}, {srd(sWS)}, 0 offen sc1", tag="ypub")
    stamp("ypub")
    sv = list(stn)
    a("s_branch L_Oend")
    a("L_R:")
    T = [alloc(("t", u)) for u in range(2)]
    poll("O2", [f"buffer_load_dword v{P[2]}, v{VY}, {srd(sWS)}, 0 offen sc1"], [P[2]])
    def red_b1b4b5(r):
        a(f"v_add_f32_dpp v{r}, v{r}, v{r} quad_perm:[2,3,0,1] {FULL}")
        a(f"v_mov_b32 v{V_T1}, v{r}")
        a(f"v_permlane16_swap_b32 v{r}, v{V_T1}")
        a(f"v_add_f32 v{r}, v{r}, v{V_T1}")
        a(f"v_mov_b32 v{V_T1}, v{r}")
        a(f"v_permlane32_swap_b32 v{r}, v{V_T1}")
        a(f"v_add_f32 v{r}, v{r}, v{V_T1}")
    H = P[2]
    red_b1b4b5(H)
    bf16r(H, H)
    a(f"v_lshlrev_b32 v{V_X}, 16, v{V_X}")
    a(f"v_add_f32 v{H}, v{H}, v{V_X}")
    bf16r(H, H)
    so = ["0", "s4", "s5", "s6", "s7"]
    sets = []
    for q_ in range(c["k3"]):
        bs = [alloc(("zs", q_, u)) for u in range(5)]
        sets.append([b_ + k for b_ in bs for k in range(4)])
    mk3 = lambda rs: [f"buffer_load_dwordx4 {r4(rs[4*t])}, v{VZ if t < 4 else VZ4}, {srd(sWS)}, {so[t]} offen sc1" for t in range(5)]
    def red3(rs):
        for k in range(4):
            a(f"v_add_f32 v{T[0]+k}, v{rs[k]}, v{rs[4+k]}")
            a(f"v_add_f32 v{T[1]+k}, v{rs[8+k]}, v{rs[12+k]}")
        for k in range(4):
            a(f"v_add_f32 v{T[0]+k}, v{T[0]+k}, v{rs[16+k]}")
        for k in range(4):
            a(f"v_add_f32 v{T[0]+k}, v{T[0]+k}, v{T[1]+k}")
    if c["gate3"]:
        gate("3", f"buffer_load_dword v{T[1]}, v{VZ}, {srd(sWS)}, 0 offen sc1", T[1], c["gate3"], c["gsl3"])
    ppoll("O3", mk3, sets, red3)
    stamp("got3")
    Z = T[0]
    for i in range(2):
        a(f"v_add_f32_dpp v{Z+i}, v{Z+i}, v{Z+i} row_ror:8 row_mask:0xf bank_mask:0x3")
    for i in range(2):
        a(f"v_add_f32_dpp v{Z+i}, v{Z+i+2}, v{Z+i+2} row_ror:8 row_mask:0xf bank_mask:0xc")
    a(f"v_add_f32_dpp v{Z}, v{Z}, v{Z} row_shl:4 row_mask:0xf bank_mask:0x5")
    a(f"v_add_f32_dpp v{Z}, v{Z+1}, v{Z+1} row_shr:4 row_mask:0xf bank_mask:0xa")
    red_b1b4b5(Z)
    bf16r(Z, Z)
    a(f"v_add_f32 v{Z}, v{Z}, v{H}")
    a(f"v_cvt_pk_bf16_f32 v{Z}, v{Z}, v{Z}")
    a(f"buffer_store_short v{Z}, v{VOUT}, {srd(sOUT)}, 0 offen")
    stamp("end")
    a("L_Oend:")
    finish("O")

    restore()
    a("L_roleF:")
    VF1 = V_R; VF2 = V_R + 1; VY = V_R + 2; VZS = V_R + 3; VH0 = V_R + 4; VH1 = V_R + 5; VCS = V_R + 6; VSTW = V_R + 7
    VCR = V_R + 8; VGW = V_R + 9; VGR = V_R + 10; VX0 = V_R + 11; VX1 = V_R + 12; VYB = V_R + 13; VW2R = V_X
    S_VAL = S_MA; S_L36 = S_MC; S_E1 = 4; S_E3 = 6
    a(f"v_lshrrev_b32 v{V_T0}, 3, v0")
    a(f"v_mul_u32_u24 v{VCR}, 48, v{V_T0}")
    a(f"v_mul_u32_u24 v{V_T0}, {9*9216}, v{V_T0}")
    a(f"v_and_b32 v{V_T1}, 3, v{V_L}")
    a(f"v_lshl_add_u32 v{VF1}, v{V_T1}, 4, v{V_T0}")
    a(f"s_lshl_b32 s{S_OQ}, s{S_IDX}, 6")
    VG64 = V_XS
    a(f"s_mov_b32 s{S_E1}, 0xf0f0f0f0"); a(f"s_mov_b32 s{S_E1+1}, 0xf0f0f0f0")
    a(f"v_add_u32 v{VF1}, s{S_OQ}, v{VF1}")
    a(f"v_mov_b32 v{V_T0}, s{sW1}"); a(f"v_mov_b32 v{V_T1}, s{sW3}")
    a(f"v_mov_b32 v{V_T2}, s{sW1+1}"); a(f"v_mov_b32 v{V_T3}, s{sW3+1}")
    a(f"v_cndmask_b32 v{V_T0}, v{V_T0}, v{V_T1}, s[{S_E1}:{S_E1+1}]")
    a(f"v_cndmask_b32 v{V_T2}, v{V_T2}, v{V_T3}, s[{S_E1}:{S_E1+1}]")
    a(f"v_add_co_u32 v{VG64}, vcc, v{V_T0}, v{VF1}")
    a(f"v_addc_co_u32 v{VG64+1}, vcc, 0, v{V_T2}, vcc")
    def ldF(t):
        b = alloc(("F", t))
        if t < 9:
            if c["foob"]:
                a(f"buffer_load_dwordx4 {r4(b)}, v{VF1}, {srd(sW1)}, 0 offen {polF}", tag=("F", t))
            else:
                a(f"global_load_dwordx4 {r4(b)}, {r2(VG64)}, off {polF}", tag=("F", t))
            if t < 8:
                a(f"v_add_co_u32 v{VG64}, vcc, 9216, v{VG64}")
                a(f"v_addc_co_u32 v{VG64+1}, vcc, 0, v{VG64+1}, vcc")
    def ldD(t):
        a(f"s_mov_b32 m0, s{S_T2}")
        a(f"s_addk_i32 s{S_T2}, 0x2000")
        a(f"buffer_load_dwordx4 v{V_KO if t < 4 else VF2}, {srd(sW2)}, s{S_OK} offen {c['pol2']} lds", tag=("D", t))
        a(f"s_addk_i32 s{S_OK}, 0x2000")
    issuers["F"] = ldF; issuers["D"] = ldD
    late = [("D", t) for t in range(5)] + [("F", t) for t in range(9)]
    if not c["w2first"]: late = late[5:] + late[:5]
    npre = c["nFpre"]
    for t in late[:npre]: seq.append(t)
    def f_setup():
        a(f"v_lshrrev_b32 v{V_T1}, 3, v{V_I}")
        a(f"v_lshrrev_b32 v{V_T2}, 1, v{V_G}")
        a(f"v_cmp_eq_u32 s[{S_VAL}:{S_VAL+1}], v{V_T1}, v{V_T2}")
        a(f"v_bfe_u32 v{V_T2}, v{V_L}, 2, 1")
        a(f"v_mul_u32_u24 v{V_T2}, 2112, v{V_T2}")
        a(f"v_lshl_add_u32 v{V_T2}, v{V_T1}, 7, v{V_T2}")
        a(f"v_and_b32 v{V_T3}, 0x70, v{V_W1}")
        a(f"s_lshl_b32 s{S_T0}, s{S_W}, 8")
        a(f"v_add3_u32 v{VGW}, v{V_T2}, v{V_T3}, s{S_T0}")
        a(f"v_mul_u32_u24 v{V_T1}, 2112, v{V_T1}")
        a(f"v_and_b32 v{V_T2}, 7, v{V_I}")
        a(f"v_lshl_add_u32 v{V_T2}, v{V_G}, 3, v{V_T2}")
        a(f"v_lshl_add_u32 v{VGR}, v{V_T2}, 2, v{V_T1}")
        a(f"s_mul_i32 s{S_OK}, s{S_IDX}, {32*1152}")
        a(f"s_mul_i32 s{S_T1}, s{S_W}, 144")
        a(f"v_mul_u32_u24 v{V_T1}, {8*1152}, v{V_G}")
        a(f"v_min_u32 v{V_T2}, 8, v{V_I}")
        a(f"v_lshl_add_u32 v{V_T1}, v{V_T2}, 4, v{V_T1}")
        a(f"v_add_u32 v{VW2R}, s{S_T1}, v{V_T1}")
        a(f"v_cmp_gt_u32 vcc, 0x100, v0")
        a(f"s_lshl_b32 s{S_T2}, s{S_T1}, 1")
        a(f"s_add_u32 s{S_T0}, s{S_M}, s{S_T2}")
        a(f"v_cndmask_b32 v{VF2}, v{V_OOB}, v{V_KO}, vcc")
        a(f"v_cmp_gt_u32 vcc, 9, v{V_I}")
        if c["zt"]:
            a(f"s_mul_i32 s{S_T0}, s{S_W}, {9*4608}")
            a(f"s_lshl5_add_u32" if False else f"s_add_u32 s{S_T0}, s{S_T0}, {WS_Z}")
            a(f"s_lshl_b32 s19, s{S_IDX}, 5")
            a(f"s_add_u32 s{S_T0}, s{S_T0}, s19")
            a(f"v_mul_u32_u24 v{V_T1}, 4608, v{V_I}")
        else:
            a(f"v_lshlrev_b32 v{V_T1}, 5, v{V_I}")
        a(f"v_lshl_add_u32 v{V_T1}, v{V_G}, 4, v{V_T1}")
        a(f"v_add_u32 v{V_T1}, s{S_T0}, v{V_T1}")
        a(f"v_cndmask_b32 v{V_T1}, v{V_OOB}, v{V_T1}, vcc")
        a(f"v_cmp_gt_u32 vcc, 32, v{V_L}")
        a(f"v_cndmask_b32 v{VZS}, v{V_OOB}, v{V_T1}, vcc")
        a(f"v_lshl_add_u32 v{V_T1}, v{V_L}, 1, s{S_T1}")
        a(f"buffer_load_ushort v{VX0}, v{V_T1}, {srd(sX)}, 0 offen", tag="xf")
        a(f"v_and_b32 v{V_T2}, 7, v{V_L}")
        a(f"v_lshl_add_u32 v{V_T1}, v{V_T2}, 1, s{S_T1}")
        a(f"buffer_load_ushort v{VX1}, v{V_T1}, {srd(sX)}, 0 offen offset:128", tag="xf")
        a(f"s_add_u32 s{S_T2}, s{S_T2}, {WS_Y}")
        a(f"v_lshl_add_u32 v{VY}, v{V_L}, 2, s{S_T2}")
        a(f"v_lshrrev_b32 v{V_T1}, 3, v{V_L}")
        a(f"v_mul_u32_u24 v{V_T1}, 2304, v{V_T1}")
        a(f"v_lshl_add_u32 v{V_T1}, v{V_T2}, 2, v{V_T1}")
        a(f"v_add_u32 v{VYB}, s{S_T2}, v{V_T1}")
        a(f"s_mul_i32 s{S_T0}, s{S_W}, 384")
        a(f"s_add_u32 s{S_T0}, s{S_T0}, {L_HC}")
        a(f"v_mov_b32 v{V_T3}, {L_DUM}")
        a(f"v_mul_u32_u24 v{V_T1}, 57, v{V_L}")
        a(f"v_lshrrev_b32 v{V_T1}, 9, v{V_T1}")
        a(f"v_mad_u32_u24 v{V_T1}, v{V_T1}, 3, v{V_L}")
        a(f"v_lshl_add_u32 v{VH0}, v{V_T1}, 2, s{S_T0}")
        a(f"s_add_u32 s{S_T0}, s{S_T0}, {(64+21)*4}")
        a(f"v_lshl_add_u32 v{VH1}, v{V_T2}, 2, s{S_T0}")
        a(f"v_cmp_gt_u32 s[{S_L36}:{S_L36+1}], 8, v{V_L}")
        a(f"v_cmp_eq_u32 vcc, 63, v{V_L}")
        a(f"v_lshl_add_u32 v{V_T1}, v{V_W2}, 1, {L_ST}" if False else f"v_lshlrev_b32 v{V_T1}, 1, v{V_W2}")
        a(f"v_add_u32 v{V_T1}, {L_ST}, v{V_T1}")
        a(f"v_cndmask_b32 v{VSTW}, v{V_T3}, v{V_T1}, vcc")
        a(f"s_lshl_b32 s{S_T2}, s{S_W}, 10")
        a(f"s_add_u32 s{S_T2}, s{S_T2}, {L_W2}")
        a(f"s_mov_b32 s16, {2*2304}"); a(f"s_mov_b32 s17, {4*2304}"); a(f"s_mov_b32 s18, {6*2304}")
    def colsum_a():
        assert not a.pending("xf")
        for d in range(4):
            a(f"v_and_b32 v{SCR+d}, 0x3f803f80, v{V_M+d}")
            a(f"v_mov_b32 v{SCR+4+d}, 0")
        a(f"v_lshlrev_b32 v{VX0}, 16, v{VX0}")
        a(f"v_lshlrev_b32 v{VX1}, 16, v{VX1}")
        for t in range(9):
            a.wait(("F", t))
            if t == 8: a.wait(("D", 4))
            if t in (2, 8): stamp(f"f{t}")
            a(f"v_mfma_f32_16x16x32_bf16 {r4(SCR+4)}, {r4(SCR)}, {r4(slot[('F', t)])}, {r4(SCR+4)}")
        a(f"s_mov_b64 exec, s[{S_VAL}:{S_VAL+1}]")
        a(f"ds_write_b128 v{VGW}, {r4(SCR+4)} offset:{L_CP}")
        a(f"s_mov_b64 exec, -1")
        a("s_waitcnt lgkmcnt(0)")
        a("s_barrier")
    def read16(base_off, gr):
        a(f"v_add_u32 v{V_T0}, {base_off}, v{VGR}")
        a(f"v_add_u32 v{V_T1}, {base_off+1024}, v{VGR}")
        for u in range(8):
            b = V_T0 if u < 4 else V_T1
            a(f"ds_read2_b32 {r2(gr[2*u])}, v{b} offset0:{64*(u&3)} offset1:{64*(u&3)+32}")
    def tree(gr):
        st = 1
        while st < len(gr):
            for u in range(0, len(gr), 2 * st):
                a(f"v_add_f32 v{gr[u]}, v{gr[u]}, v{gr[u+st]}")
            st *= 2
    def colsum_b():
        gr = [SCR + u for u in range(16)]
        read16(L_CP, gr)
        a("s_waitcnt lgkmcnt(0)")
        tree(gr)
        a(f"v_mov_b32 v{VCS}, v{gr[0]}")
    vphase({RD: [f_setup]}, N)
    publish("F")
    flush_seq()
    for n_, t in enumerate(late):
        if n_ < npre: continue
        if c["fbar"] and n_ == (5 if c["w2first"] else 9): a("s_barrier"); stamp("b1")
        issuers[t[0]](t[1])
    U = [alloc(("u", u)) for u in range(8)]
    W2 = [alloc(("w2", u)) for u in range(8)]
    sets = []
    for q_ in range(c["k2"]):
        bs = [alloc(("ys", q_, u)) for u in range(3)]
        sets.append([bs[u >> 2] + (u & 3) for u in range(9)])
    a(f"v_add_u32 v{V_T4}, {L_GP}, v{VGR}")
    a(f"v_add_u32 v{V_T5}, {L_GP+1024}, v{VGR}")
    a(f"v_mov_b32 v{V_W2}, 0")
    a(f"s_mov_b32 s{S_T1}, 0xbfb8aa3b")
    for k in range(4):
        a(f"v_mov_b32 v{V_ACC+k}, 0")
    so = ["0", "s16", "s17", "s18"]
    mk2 = lambda yr: [f"buffer_load_dword v{yr[8]}, v{VYB}, {srd(sWS)}, 0 offen offset:256 sc1"] + \
        [f"buffer_load_dword v{yr[u]}, v{VY}, {srd(sWS)}, {so[u>>1]} offen offset:{2304*(u&1)} sc1" for u in range(8)]
    stamp("iss")
    if c["fbar"]: a("s_barrier")
    if not c["polllate"] and not c["gate2"]:
        for l in mk2(sets[0]): a(l)
    colsum_a()
    stamp("cb")
    if c["polllate"] and not c["gate2"]:
        for l in mk2(sets[0]): a(l)
    colsum_b()
    stamp("w13")
    for t in range(8):
        a(f"ds_read_b128 {r4(W2[t])}, v{VW2R} offset:{L_W2+1152*t}")
    H0, H1 = V_Q, V_Q + 1
    def red2(yr):
        a(f"v_add_f32_dpp v{H1}, v{yr[8]}, v{yr[8]} row_ror:8 {FULL}")
        a(f"v_add_f32 v{H0}, v{yr[0]}, v{yr[1]}")
        a(f"v_add_f32 v{H0+2}, v{yr[2]}, v{yr[3]}")
        a(f"v_mov_b32 v{V_T0}, v{H1}")
        a(f"v_add_f32 v{H0+3}, v{yr[4]}, v{yr[5]}")
        a(f"v_add_f32 v{V_T1}, v{yr[6]}, v{yr[7]}")
    if c["gate2"]:
        a(f"s_cmp_lg_u32 s{S_W}, 0")
        a("s_cbranch_scc1 L_g2")
        gate("2", mk2(sets[0])[0], sets[0][8], c["gate2"] - 1, c["gsl2"])
        a("L_g2:")
        a("s_barrier")
    if c["sel2"]:
        spoll("F2", mk2(sets[0]), [[sets[0][8]]] + [[r] for r in sets[0][:8]], first_issued=not c["gate2"]); red2(sets[0])
    else:
        ppoll("F2", mk2, sets, red2, first_issued=not c["gate2"])
    stamp("got2")
    a(f"v_permlane16_swap_b32 v{H1}, v{V_T0}")
    a(f"v_add_f32 v{H0}, v{H0}, v{H0+2}")
    a(f"v_add_f32 v{H1}, v{H1}, v{V_T0}")
    a(f"v_add_f32 v{H0+3}, v{H0+3}, v{V_T1}")
    a(f"v_mov_b32 v{V_T0}, v{H1}")
    a(f"v_add_f32 v{H0}, v{H0}, v{H0+3}")
    a(f"v_cvt_pk_bf16_f32 v{H0}, v{H0}, v{H0}")
    a(f"v_permlane32_swap_b32 v{H1}, v{V_T0}")
    a(f"v_and_b32 v{H0}, 0xffff0000, v{H0}")
    a(f"v_add_f32 v{H1}, v{H1}, v{V_T0}")
    a(f"v_add_f32 v{H0}, v{H0}, v{VX0}")
    a(f"v_cvt_pk_bf16_f32 v{H1}, v{H1}, v{H1}")
    a(f"v_cvt_pk_bf16_f32 v{H0}, v{H0}, v{H0}")
    a(f"v_and_b32 v{H1}, 0xffff0000, v{H1}")
    a(f"ds_write_b32 v{VH0}, v{H0}")
    a(f"v_add_f32 v{H1}, v{H1}, v{VX1}")
    a(f"v_cvt_pk_bf16_f32 v{H1}, v{H1}, v{H1}")
    a(f"ds_write_b32 v{VH1}, v{H1}")
    a(f"ds_read_b128 {r4(U[0])}, v{VCR} offset:{L_HC}")
    a(f"ds_read_b128 {r4(U[1])}, v{VCR} offset:{L_HC+16}")
    a(f"ds_read_b32 v{U[2]}, v{VCR} offset:{L_HC+32}")
    S1, S2 = V_T2, V_T3
    a(f"v_and_b32 v{H0}, 0xffff0000, v{H0}")
    a(f"v_and_b32 v{H1}, 0xffff0000, v{H1}")
    a(f"v_cndmask_b32 v{H1}, 0, v{H1}, s[{S_L36}:{S_L36+1}]")
    a(f"v_add_f32 v{S1}, v{H0}, v{H1}")
    a(f"v_mul_f32 v{S2}, v{H0}, v{H0}")
    a(f"v_fmac_f32 v{S2}, v{H1}, v{H1}")
    rs = wred_steps("v_add_f32", [S1, S2])
    for t_ in rs.pop(0): a(t_)
    a("s_waitcnt lgkmcnt(0)")
    cf = [U[0] + k for k in range(4)] + [U[1] + k for k in range(4)] + [U[2]]
    for t in range(9):
        A = A2[t & 1]
        for d in range(4):
            a(f"v_and_b32 v{A+d}, v{cf[t]}, v{V_M+d}")
        if t: a(f"v_mfma_f32_16x16x32_bf16 {r4(V_ACC)}, {r4(A2[(t-1)&1])}, {r4(slot[('F', t-1)])}, {r4(V_ACC)}")
        if rs and t >= 1:
            for t_ in rs.pop(0): a(t_)
    a(f"v_mfma_f32_16x16x32_bf16 {r4(V_ACC)}, {r4(A2[0])}, {r4(slot[('F', 8)])}, {r4(V_ACC)}")
    assert not rs
    a(f"ds_write_b64 v{VSTW}, {r2(S1)}")
    a(f"s_mov_b64 exec, s[{S_VAL}:{S_VAL+1}]")
    a(f"ds_write_b128 v{VGW}, {r4(V_ACC)} offset:{L_GP}")
    a(f"s_mov_b64 exec, -1")
    a("s_waitcnt lgkmcnt(0)")
    a("s_barrier")
    stamp("gu")
    for u in range(4):
        a(f"ds_read_b128 {r4(U[4+u])}, v{V_W2} offset:{L_ST+16*u}")
    gr = [U[u >> 2] + (u & 3) for u in range(16)]
    for u in range(8):
        b = V_T4 if u < 4 else V_T5
        a(f"ds_read2_b32 {r2(gr[2*u])}, v{b} offset0:{64*(u&3)} offset1:{64*(u&3)+32}")
    for k in range(4):
        a(f"v_mov_b32 v{V_ACC+k}, 0")
    a("s_waitcnt lgkmcnt(8)" if not c["stamps"] else "s_waitcnt lgkmcnt(0)")
    for (x, y) in ((4, 5), (6, 7), (4, 6)):
        for k in range(4):
            a(f"v_add_f32 v{U[x]+k}, v{U[x]+k}, v{U[y]+k}")
    a(f"v_add_f32 v{V_T0}, v{U[4]}, v{U[4]+2}")
    a(f"v_add_f32 v{V_T1}, v{U[4]+1}, v{U[4]+3}")
    a(f"v_mul_f32 v{V_T0}, 0x3ae38e39, v{V_T0}")
    a(f"v_mul_f32 v{V_T1}, 0x3ae38e39, v{V_T1}")
    ln_finish(V_T0, V_T1)
    a("s_waitcnt lgkmcnt(0)")
    tree(gr)
    G = gr[0]
    a(f"v_fma_f32 v{G}, -v{V_T0}, v{VCS}, v{G}")
    a(f"v_mul_f32 v{G}, v{G}, v{V_T1}")
    bf16r(G, G)
    a(f"v_mul_f32 v{V_T0}, s{S_T1}, v{G}")
    a(f"v_exp_f32 v{V_T0}, v{V_T0}")
    a(f"v_mov_b32_dpp v{V_T1}, v{G} row_ror:8 {FULL}")
    a(f"v_add_f32 v{V_T0}, 1.0, v{V_T0}")
    a(f"v_rcp_f32 v{V_T0}, v{V_T0}")
    a(f"v_mul_f32 v{V_T0}, v{G}, v{V_T0}")
    bf16r(V_T0, V_T0)
    a(f"v_mul_f32 v{V_T0}, v{V_T0}, v{V_T1}")
    a(f"v_cvt_pk_bf16_f32 v{V_C}, v{V_T0}, v{V_T0}")
    for t in range(8):
        A = A2[t & 1]
        for d in range(4):
            a(f"v_and_b32_dpp v{A+d}, v{V_C}, v{V_M+d} row_newbcast:{t} {FULL}")
        if t: a(f"v_mfma_f32_16x16x32_bf16 {r4(V_ACC)}, {r4(A2[(t-1)&1])}, {r4(W2[t-1])}, {r4(V_ACC)}")
    a(f"v_mfma_f32_16x16x32_bf16 {r4(V_ACC)}, {r4(A2[1])}, {r4(W2[7])}, {r4(V_ACC)}")
    for k in range(4):
        a(f"v_min_u32 v{V_ACC+k}, -2, v{V_ACC+k}")
    a(f"buffer_store_dwordx4 {r4(V_ACC)}, v{VZS}, {srd(sWS)}, 0 offen sc1")
    stamp("zpub")
    finish("F")

    a("L_done:")
    a("s_endpgm")
    a("L_end:")
    a.raw('.section .rodata,"a"'); a.raw(".p2align 6"); a.raw(f".amdhsa_kernel {NAME}")
    a.raw("  .amdhsa_next_free_vgpr 256"); a.raw("  .amdhsa_next_free_sgpr 102"); a.raw("  .amdhsa_accum_offset 256")
    a.raw("  .amdhsa_group_segment_fixed_size 0"); a.raw("  .amdhsa_kernarg_size 96"); a.raw("  .amdhsa_user_sgpr_count 2")
    a.raw("  .amdhsa_user_sgpr_kernarg_segment_ptr 1"); a.raw("  .amdhsa_system_sgpr_workgroup_id_x 1")
    a.raw(".end_amdhsa_kernel")
    return a.text()

if __name__ == "__main__":
    import ast
    kw = {}
    out = sys.argv[1]
    for s in sys.argv[2:]:
        k, v = s.split("=", 1)
        try: v = ast.literal_eval(v)
        except Exception: pass
        kw[k] = v
    open(out, "w").write(gen(**kw))
```

```python
import sys, os
sys.path.insert(0, "dev")
from asmdsl import Asm

NAME = "sequential_preLN__mha_block_cached__glu_gated_swiglu__decode_kernel"
_ref = "sequential_preLN__mha_block_cached__glu_gated_swiglu__decode.s.ref"
HEADER = open(_ref).read().split("; Override launch")[0] if os.path.exists(_ref) else ""

WS_O, WS_ML, WS_Y, WS_Z, WS_ST = 0, 0x20000, 0x21000, 0x26000, 0x80000
WS_SIZE = 0x100000
OOB = 0x7ffffff0
L_QP, L_QB, L_MX, L_LW, L_OP = 0, 4096, 4352, 4384, 4608
L_OC, L_YP = 8704, 10752
L_ST, L_DUM, L_FLAG, L_HID, L_HC, L_GP, L_CP = 8704, 8832, 8896, 8960, 9216, 12288, 16896
L_W2 = 21504
LDS_SIZE = L_W2 + 40960
LOG2E = 0x3fb8aa3b
SCALE = 0x3db504f3
FULL = "row_mask:0xf bank_mask:0xf"

DEF = dict(qshift=0, tight=0, twave=0xff, tby=1, gspread=1, h1w1=1, sls=0, latep=(), rot=1, h1skip=1, try1=0, g2lds=0, DSq=5, sel1=1, sel2=1, gate2=9, gsl2=2, gate3=63, gsl3=2, zt=1, sl={'O2': 4}, k1=1, k2=1, k3=1, nosig=0, noclr=0, noml=0, skip=('f2', 'f8', 'b1', 'iss', 'cb'), polllate=0, pat="QKK", B=4, DS=4, polK="nt", polQ="", polW="", polF="", pol2="nt", nFpre=5, nOpre=4, stamps=False, spin=2000000,
           qoob=0, ooob=0, foob=0, cpf=1, mltile=16, lnstep=4, boost=1, fbar=1, clrstep=4, RD=22, pfq=0, pfw=1, pf2=0, pfstride=64, pfat=18, pfgap=2, kpre=0, w2first=1)
STAMPS = {}

def gen(**kw):
    c = dict(DEF); c.update(kw)
    a = Asm()
    N = 32
    DS = c["DS"]
    polK, polQ, polW, polF = c["polK"], c["polQ"], c["polW"], c["polF"]
    sK, sV, sQ, sX, sWS, sW, sW2, sD, sW3 = 28, 32, 36, 40, 44, 48, 52, 56, 8
    def srd(b): return f"s[{b}:{b+3}]"
    S_XG, S_J, S_HEAD, S_SPLIT, S_OK, S_OV, S_OQ, S_IDX, S_T0, S_T1, S_T2, S_SPIN = 60, 61, 62, 63, 64, 65, 66, 67, 68, 69, 70, 71
    S_MA, S_MC, S_E = 72, 74, 76
    S_M = 78; S_W = 3; S_SLOT = 79
    S_STAMP = 80
    S_WT = 4
    stn = []
    def stamp(name):
        if c["stamps"] and name not in c["skip"]:
            k = len(stn); stn.append(name)
            assert k < 10
            a(f"s_memrealtime s[{S_STAMP+2*k}:{S_STAMP+2*k+1}]")
    V_L, V_G, V_I, V_KO, V_QO, V_T0, V_T1, V_T2, V_T3, V_T4, V_T5 = 1, 2, 3, 4, 5, 6, 7, 8, 9, 10, 11
    V_M = 12; V_Q = 16; V_C = 20; V_OOB = 22; V_SML = 23; V_A = 24; V_ACC = 28; V_S = 32
    V_CNT = 34; V_X = 35; V_SO = 36; V_MM = 37; V_W1 = 38; V_W2 = 39
    V_R = 40
    V_XS = 56
    POOL0 = 64; SCR = 240
    free = list(range(POOL0, SCR, 4))
    slot = {}
    def alloc(tag):
        slot[tag] = free.pop(0); return slot[tag]
    def release(tag):
        free.append(slot.pop(tag))
    def r4(b): return f"v[{b}:{b+3}]"
    def r2(b): return f"v[{b}:{b+1}]"
    def bf16r(dst, src):
        a(f"v_cvt_pk_bf16_f32 v{dst}, v{src}, v{src}")
        a(f"v_and_b32 v{dst}, 0xffff0000, v{dst}")
    def wred_steps(op, regs):
        out = []
        for k in (8, 4, 2, 1):
            out.append([f"{op}_dpp v{r}, v{r}, v{r} row_ror:{k} {FULL}" for r in regs])
        out.append([f"{op}_dpp v{r}, v{r}, v{r} row_bcast:15 row_mask:0xa bank_mask:0xf" for r in regs])
        out.append([f"{op}_dpp v{r}, v{r}, v{r} row_bcast:31 row_mask:0xc bank_mask:0xf" for r in regs])
        return out
    def wred(op, regs, sdsts):
        for g in wred_steps(op, regs):
            for t in g: a(t)
        for r, s in zip(regs, sdsts):
            a(f"v_readlane_b32 s{s}, v{r}, 63")
    def ln_finish(vmean, vvar):
        a(f"v_fma_f32 v{vvar}, -v{vmean}, v{vmean}, v{vvar}")
        a(f"v_max_f32 v{vvar}, 0, v{vvar}")
        a(f"v_cvt_pk_bf16_f32 v{vvar}, v{vvar}, v{vvar}")
        a(f"v_cvt_pk_bf16_f32 v{vmean}, v{vmean}, v{vmean}")
        a(f"v_and_b32 v{vvar}, 0xffff0000, v{vvar}")
        a(f"v_add_f32 v{vvar}, 0x3727c5ac, v{vvar}")
        bf16r(vvar, vvar)
        a(f"v_sqrt_f32 v{vvar}, v{vvar}")
        a(f"v_and_b32 v{vmean}, 0xffff0000, v{vmean}")
        bf16r(vvar, vvar)
        a(f"v_rcp_f32 v{vvar}, v{vvar}")
    def tred4(Z):
        for i in range(2):
            a(f"v_add_f32_dpp v{Z+i}, v{Z+i}, v{Z+i} row_ror:8 row_mask:0xf bank_mask:0x3")
        for i in range(2):
            a(f"v_add_f32_dpp v{Z+i}, v{Z+i+2}, v{Z+i+2} row_ror:8 row_mask:0xf bank_mask:0xc")
        a(f"v_permlane16_swap_b32 v{Z}, v{Z+1}")
        a(f"v_add_f32 v{Z}, v{Z}, v{Z+1}")
        a(f"v_mov_b32 v{Z+1}, v{Z}")
        a(f"v_permlane32_swap_b32 v{Z}, v{Z+1}")
        a(f"v_add_f32 v{Z}, v{Z}, v{Z+1}")

    a.raw(HEADER.rstrip())
    a.raw(f"; @launch grid=(256,1,1) block=(512,1,1) lds={LDS_SIZE}")
    a.raw('.amdgcn_target "amdgcn-amd-amdhsa--gfx950"')
    a.raw(".text"); a.raw(f".globl {NAME}"); a.raw(".p2align 8"); a.raw(f".type {NAME},@function"); a.raw(f"{NAME}:")
    a("L_start:")
    a(f"s_load_dwordx2 s[{sK}:{sK+1}], s[0:1], 8")
    a(f"s_load_dwordx2 s[{sX}:{sX+1}], s[0:1], 0")
    a(f"s_load_dwordx2 s[{sQ}:{sQ+1}], s[0:1], 24")
    a("s_cmp_ge_u32 s2, 256")
    a("s_cbranch_scc1 L_done")
    stamp("start")
    a(f"s_and_b32 s{S_XG}, s2, 7")
    a(f"s_lshr_b32 s{S_J}, s2, 3")
    a(f"s_and_b32 s{S_T0}, s{S_J}, 3")
    a(f"s_lshl2_add_u32 s{S_HEAD}, s{S_XG}, s{S_T0}")
    a(f"s_lshr_b32 s{S_SPLIT}, s2, 5")
    a(f"s_lshl3_add_u32 s{S_SLOT}, s{S_HEAD}, s{S_SPLIT}")
    a(f"s_lshl_b32 s{S_OK}, s{S_SLOT}, 18")
    a(f"v_lshlrev_b32 v{V_KO}, 4, v0")
    a(f"s_mov_b32 s{sK+2}, 0x4000000")
    a(f"s_mov_b32 s{sK+3}, 0x20000")
    a(f"s_mov_b32 s{S_OV}, s{S_OK}")
    a("s_waitcnt lgkmcnt(0)")

    def ldK(i):
        b = alloc(("K", i))
        a(f"buffer_load_dwordx4 {r4(b)}, v{V_KO}, {srd(sK)}, s{S_OK} offen {polK}", tag=("K", i))
        if i < N - 1: a(f"s_addk_i32 s{S_OK}, 0x2000")
    def ldV(i):
        b = alloc(("V", i))
        a(f"buffer_load_dwordx4 {r4(b)}, v{V_KO}, {srd(sV)}, s{S_OV} offen {polK}", tag=("V", i))
        if i < N - 1: a(f"s_addk_i32 s{S_OV}, 0x2000")
    def ldQ(i):
        b = alloc(("Q", i))
        a(f"buffer_load_dwordx4 {r4(b)}, v{V_QO}, {srd(sQ)}, s{S_OQ} offen {polQ}", tag=("Q", i))
        if i < 17:
            a(f"s_add_u32 s{S_OQ}, s{S_OQ}, 0x40000")
            if c["rot"]:
                a(f"s_cmp_eq_u32 s{S_OQ}, 0x480000")
                a(f"s_cselect_b32 s{S_OQ}, 0, s{S_OQ}")
    seq = [("K", i) for i in range(DS + c["kpre"])]
    ki = DS + c["kpre"]; qi = 0; pat = c["pat"]; p = 0
    while qi < 18:
        ch = pat[p % len(pat)]; p += 1
        if ch == "Q": seq.append(("Q", qi)); qi += 1
        elif ki < N: seq.append(("K", ki)); ki += 1
    while ki < N:
        seq.append(("K", ki)); ki += 1
    for i in range(N): seq.append(("V", i))
    issuers = {"K": ldK, "V": ldV, "Q": ldQ}
    nxt = [0]; landed = []; wtd = [0]; cur = [DS]; tightok = [False]; tn = [0]; S_TF = 101
    def step(depth=None):
        d = cur[0] if depth is None else depth
        k = nxt[0]
        upto = min(k - d, len(seq) - 1)
        if upto >= wtd[0]:
            a.wait(seq[upto])
            while wtd[0] <= upto:
                landed.append(seq[wtd[0]]); wtd[0] += 1
            if c["tight"] and tightok[0] and k < len(seq) and upto + c["tby"] < k and seq[upto + c["tby"]] in a.vm:
                idx = max(i for i, t in enumerate(a.vm) if t == seq[upto + c["tby"]])
                tn[0] += 1
                a(f"s_bitcmp0_b32 s{S_TF}, 0")
                a(f"s_cbranch_scc1 L_t{tn[0]}")
                a(f"s_waitcnt vmcnt({len(a.vm) - 1 - idx})")
                a(f"L_t{tn[0]}:")
        if k < len(seq):
            t = seq[k]; issuers[t[0]](t[1])
        nxt[0] += 1
    def boost():
        for u in range(c["boost"]): step(cur[0] + 1 + u)
    for _ in range(DS): step()
    a(f"s_load_dwordx2 s[{sV}:{sV+1}], s[0:1], 16")
    a(f"s_load_dwordx2 s[{sWS}:{sWS+1}], s[0:1], 88")
    a(f"s_load_dwordx2 s[{sD}:{sD+1}], s[0:1], 80")
    a("s_load_dwordx2 s[12:13], s[0:1], 32")
    a("s_load_dwordx8 s[16:23], s[0:1], 48")
    a(f"v_and_b32 v{V_L}, 63, v0")
    a(f"s_mov_b32 s{sX+2}, 1152"); a(f"s_mov_b32 s{sX+3}, 0x20000")
    a(f"v_lshlrev_b32 v{V_T5}, 3, v{V_L}")
    a(f"v_and_b32 v{V_I}, 15, v0")
    a(f"v_lshrrev_b32 v{V_T1}, 4, v0")
    for t in range(3):
        a(f"buffer_load_dwordx2 {r2(V_XS+2*t)}, v{V_T5}, {srd(sX)}, 0 offen offset:{512*t}", tag="xs")
    if c["rot"]:
        a(f"s_mul_i32 s{S_T1}, s{S_SPLIT}, 9")
        a(f"s_lshr_b32 s{S_T1}, s{S_T1}, 2")
        a(f"v_add_u32 v{V_T2}, s{S_T1}, v{V_I}")
        for k in range(2):
            if k: a(f"v_add_u32 v{V_T2}, 16, v{V_T2}")
            a(f"v_subrev_u32 v{V_T3}, 18, v{V_T2}")
            a(f"v_min_u32 v{V_T3}, v{V_T2}, v{V_T3}")
            a(f"v_lshl_add_u32 v{V_T3}, v{V_T3}, 5, v{V_T1}")
            a(f"v_lshlrev_b32 v{V_T3}, 1, v{V_T3}")
            a(f"buffer_load_ushort v{V_XS+6+k}, v{V_T3}, {srd(sX)}, 0 offen", tag="xc")
        a(f"v_lshlrev_b32 v{V_QO}, 13, v{V_T1}")
        a(f"s_lshl_b32 s{S_OQ}, s{S_T1}, 18")
        a(f"s_lshl_b32 s{S_T0}, s{S_HEAD}, 8")
        a(f"v_lshl_add_u32 v{V_QO}, v{V_I}, 4, v{V_QO}")
        a(f"v_add_u32 v{V_QO}, s{S_T0}, v{V_QO}")
    else:
        a(f"v_lshl_add_u32 v{V_T3}, v{V_I}, 5, v{V_T1}")
        a(f"v_lshlrev_b32 v{V_T3}, 1, v{V_T3}")
        a(f"buffer_load_ushort v{V_XS+6}, v{V_T3}, {srd(sX)}, 0 offen", tag="xc")
        a(f"buffer_load_ushort v{V_XS+7}, v{V_T3}, {srd(sX)}, 0 offen offset:1024", tag="xc")
        a(f"v_lshlrev_b32 v{V_QO}, 13, v{V_T1}")
        a(f"s_lshl_b32 s{S_OQ}, s{S_HEAD}, 8")
        a(f"v_lshl_add_u32 v{V_QO}, v{V_I}, 4, v{V_QO}")
    if c["qshift"]: a(f"v_xor_b32 v{V_QO}, {c['qshift']}, v{V_QO}")
    a(f"s_mov_b32 s{sQ+2}, {0 if c['qoob'] else 576*8192}"); a(f"s_mov_b32 s{sQ+3}, 0x20000")
    a(f"v_mov_b32 v{V_OOB}, {hex(OOB)}")
    a(f"v_lshrrev_b32 v{V_T0}, 6, v0")
    a(f"v_lshrrev_b32 v{V_G}, 4, v{V_L}")
    a(f"v_readfirstlane_b32 s{S_W}, v{V_T0}")
    if c["pfq"]:
        a(f"v_mad_u32_u24 v{V_T2}, v{V_T0}, 36, v{V_L}")
        a(f"v_lshrrev_b32 v{V_T3}, 4, v{V_T2}")
        a(f"v_and_b32 v{V_T2}, 15, v{V_T2}")
        a(f"v_lshlrev_b32 v{V_T3}, 13, v{V_T3}")
        a(f"v_lshl_add_u32 v{V_T2}, v{V_T2}, 6, v{V_T3}")
        a(f"v_cmp_gt_u32 vcc, 36, v{V_L}")
        a(f"s_mul_i32 s{S_T0}, s{S_J}, {18*8192}")
        a(f"s_lshl_b32 s{S_T1}, s{S_XG}, 10")
        a(f"v_cndmask_b32 v{V_T2}, v{V_OOB}, v{V_T2}, vcc")
        a(f"s_add_u32 s{S_T0}, s{S_T0}, s{S_T1}")
        a(f"buffer_load_dword v{SCR+4}, v{V_T2}, {srd(sQ)}, s{S_T0} offen", tag="pfq")
    if c["cpf"]:
        a("s_getpc_b64 s[4:5]")
        a("L_pc:")
        a(f"s_and_b32 s{S_T0}, s{S_J}, 1")
        a(f"s_lshl_b32 s{S_T0}, s{S_T0}, 13")
        a(f"v_add_u32 v{V_T2}, s{S_T0}, v{V_KO}")
        a(f"v_min_u32 v{V_T2}, L_end-L_pc-16, v{V_T2}")
        a(f"v_mov_b32 v{V_T3}, s5")
        a(f"v_add_co_u32 v{V_T2}, vcc, s4, v{V_T2}")
        a(f"v_addc_co_u32 v{V_T3}, vcc, 0, v{V_T3}, vcc")
        a(f"global_load_dwordx4 {r4(SCR)}, v[{V_T2}:{V_T3}], off", tag="cpf")
    a(f"v_and_b32 v{V_T0}, 1, v{V_L}")
    a(f"v_lshlrev_b32 v{V_T0}, 4, v{V_T0}")
    a(f"v_mov_b32 v{V_T1}, 0xffff")
    a(f"v_lshlrev_b32 v{V_T0}, v{V_T0}, v{V_T1}")
    a(f"v_bfe_u32 v{V_T1}, v{V_L}, 1, 2")
    for d in range(4):
        a(f"v_cmp_eq_u32 s[{4+2*(d&1)}:{5+2*(d&1)}], {d}, v{V_T1}")
        if d: a(f"v_cndmask_b32 v{V_M+d-1}, 0, v{V_T0}, s[{4+2*((d-1)&1)}:{5+2*((d-1)&1)}]")
    a(f"v_cndmask_b32 v{V_M+3}, 0, v{V_T0}, s[6:7]")
    for k in range(4):
        a(f"v_mov_b32 v{V_ACC+k}, 0")
    a(f"v_mov_b32 v{V_T0}, 0"); a(f"v_mov_b32 v{V_T1}, 0"); a(f"v_mov_b32 v{V_T2}, 0x3f803f80")
    if c["tight"]:
        a(f"s_lshr_b32 s{S_TF}, {c['tight']}, s{S_XG}")
        a(f"s_lshr_b32 s{S_T0}, {c['twave']}, s{S_W}")
        a(f"s_and_b32 s{S_TF}, s{S_TF}, s{S_T0}")
        tightok[0] = True
    if c["DSq"]:
        while cur[0] < c["DSq"]:
            cur[0] += 1; step()
    for _ in range(c["lnstep"]): step()
    a.wait("xc")
    for t in range(6):
        a(f"v_dot2c_f32_bf16 v{V_T0}, v{V_XS+t}, v{V_T2}")
        a(f"v_dot2c_f32_bf16 v{V_T1}, v{V_XS+t}, v{V_XS+t}")
    wred("v_add_f32", [V_T0, V_T1], [S_T0, S_T1])
    a(f"v_mov_b32 v{V_T1}, 0x3ae38e39")
    a(f"v_mul_f32 v{V_T0}, s{S_T0}, v{V_T1}")
    a(f"v_mul_f32 v{V_T1}, s{S_T1}, v{V_T1}")
    ln_finish(V_T0, V_T1)
    for k in range(2):
        a(f"v_lshlrev_b32 v{V_C+k}, 16, v{V_XS+6+k}")
    for k in range(2):
        a(f"v_sub_f32 v{V_C+k}, v{V_C+k}, v{V_T0}")
    for k in range(2):
        bf16r(V_C + k, V_C + k)
    for k in range(2):
        a(f"v_mul_f32 v{V_C+k}, v{V_C+k}, v{V_T1}")
    for k in range(2):
        a(f"v_cvt_pk_bf16_f32 v{V_C+k}, v{V_C+k}, v{V_C+k}")
    stamp("ln")
    def gemv_dpp(coef, i, tag):
        for d in range(4):
            a(f"v_and_b32_dpp v{V_A+d}, v{coef}, v{V_M+d} row_newbcast:{i} {FULL}")
        a.wait(tag)
        a(f"v_mfma_f32_16x16x32_bf16 {r4(V_ACC)}, {r4(V_A)}, {r4(slot[tag])}, {r4(V_ACC)}")
        release(tag)
    def clear_setup():
        a("s_waitcnt lgkmcnt(0)")
        for b, n in ((sV, 0x4000000), (sWS, WS_SIZE), (sD, 256)):
            a(f"s_mov_b32 s{b+2}, {hex(n)}")
            a(f"s_mov_b32 s{b+3}, 0x20000")
        a(f"s_mul_i32 s{S_T0}, s{S_XG}, 9")
        a(f"s_add_u32 s{S_T1}, s{S_T0}, s{S_J}")
        a(f"s_add_u32 s{S_T0}, s{S_T0}, s{S_T1}")
        a(f"s_sub_u32 s{S_T0}, s{S_T0}, 9")
        a(f"s_cmp_lt_u32 s{S_J}, 9")
        a(f"s_cselect_b32 s{S_IDX}, s{S_T1}, s{S_T0}")
        a(f"s_movk_i32 s{S_T0}, 2304")
        a(f"s_mov_b32 s{S_T1}, {WS_Z}")
        a(f"s_cselect_b32 s{S_T0}, 0x100, s{S_T0}")
        a(f"s_cselect_b32 s{S_T1}, {WS_Y}, s{S_T1}")
        a(f"s_mul_i32 s{S_T0}, s{S_T0}, s{S_IDX}")
        a(f"s_add_u32 s{S_M}, s{S_T0}, s{S_T1}")
        a(f"v_cmp_gt_u32 vcc, 128, v0")
        a(f"s_lshl_b32 s{S_T0}, s2, 11")
        for k in range(4):
            a(f"v_mov_b32 v{V_R+k}, -1")
        a(f"v_cndmask_b32 v{V_T0}, v{V_OOB}, v{V_KO}, vcc")
        if not c["noclr"]: a(f"buffer_store_dwordx4 {r4(V_R)}, v{V_T0}, {srd(sWS)}, s{S_T0} offen sc1", tag="clr")
        a(f"s_lshl4_add_u32 s{S_T1}, s{S_SLOT}, {WS_ML}")
        a(f"v_mov_b32 v{V_SML}, s{S_T1}")
        a(f"v_cmp_eq_u32 vcc, {3*64+32}, v0")
        a(f"s_lshl_b32 s{S_T0}, s{S_SLOT}, 9")
        a(f"v_cndmask_b32 v{V_SML}, v{V_OOB}, v{V_SML}, vcc")
        a(f"v_and_b32 v{V_T0}, 7, v{V_L}")
        a(f"v_bfe_u32 v{V_T1}, v{V_L}, 3, 1")
        a(f"v_lshl_add_u32 v{V_T0}, v{V_T0}, 1, v{V_T1}")
        a(f"v_bfe_u32 v{V_T1}, v{V_L}, 4, 1")
        a(f"v_lshl_add_u32 v{V_T0}, v{V_T0}, 1, v{V_T1}")
        a(f"v_lshlrev_b32 v{V_X}, 2, v{V_T0}")
        a(f"s_lshl_b32 s{S_T1}, s{S_W}, 7")
        a(f"s_add_u32 s{S_T0}, s{S_T0}, s{S_T1}")
        a(f"v_add_u32 v{V_T0}, s{S_T0}, v{V_X}")
        a(f"v_and_b32 v{V_T1}, 0x120, v0")
        a(f"v_cmp_eq_u32 vcc, 0, v{V_T1}")
        a(f"s_mov_b32 s{S_MA}, 0xaaaaaaaa"); a(f"s_mov_b32 s{S_MA+1}, 0xaaaaaaaa")
        a(f"v_cndmask_b32 v{V_SO}, v{V_OOB}, v{V_T0}, vcc")
        a(f"s_mov_b32 s{S_MC}, 0xcccccccc"); a(f"s_mov_b32 s{S_MC+1}, 0xcccccccc")
        a(f"v_and_b32 v{V_T0}, 1, v{V_G}")
        a(f"v_lshlrev_b32 v{V_T0}, 4, v{V_T0}")
        a(f"v_lshl_add_u32 v{V_T0}, v{V_I}, 5, v{V_T0}")
        a(f"s_lshl_b32 s{S_T0}, s{S_W}, 9")
        a(f"v_add_u32 v{V_W1}, s{S_T0}, v{V_T0}")
        a(f"s_lshl_b32 s{S_T1}, s{S_W}, 2")
        a(f"v_mov_b32 v{V_W2}, s{S_T1}")
        a(f"s_mov_b32 s{S_SPIN}, {c['spin']}")
    def signal():
        assert not a.pending("clr")
        a("s_barrier")
        a(f"v_cmp_eq_u32 vcc, 0, v0")
        a(f"s_and_b32 s{S_T0}, s2, 3")
        a(f"s_lshl_b32 s{S_T0}, s{S_T0}, 6")
        a(f"v_mov_b32 v{V_T2}, s{S_T0}")
        a(f"v_cndmask_b32 v{V_T1}, v{V_OOB}, v{V_T2}, vcc")
        a(f"v_mov_b32 v{V_T2}, 1")
        if not c["nosig"]: a(f"buffer_atomic_add v{V_T2}, v{V_T1}, {srd(sD)}, 0 offen sc1", tag="sig")
    qdone = 0; ns = 0
    while qdone < 18:
        while ("Q", qdone) in landed:
            landed.remove(("Q", qdone))
            gemv_dpp(V_C + (qdone >> 4), qdone & 15, ("Q", qdone)); qdone += 1
        if ns == c["clrstep"]: clear_setup()
        if ns == c["clrstep"] + cur[0] + 1: signal()
        ns += 1
        if qdone < 18: step()
    assert ns > c["clrstep"] + cur[0] + 1
    boost()
    a(f"ds_write_b128 v{V_W1}, {r4(V_ACC)} offset:{L_QP}")
    for k in range(16):
        a(f"v_mov_b32 v{V_R+k}, 0")
    a("s_waitcnt lgkmcnt(0)")
    a("s_barrier")
    a(f"s_cmp_lg_u32 s{S_W}, 0")
    a("s_cbranch_scc1 L_q2")
    a(f"v_lshlrev_b32 v{V_T0}, 3, v{V_L}")
    TT = SCR
    for u in range(8):
        a(f"ds_read_b64 {r2(TT+2*u)}, v{V_T0} offset:{L_QP+512*u}")
    a("s_waitcnt lgkmcnt(0)")
    st = 1
    while st < 8:
        for u in range(0, 8, 2 * st):
            for k in range(2):
                a(f"v_add_f32 v{TT+2*u+k}, v{TT+2*u+k}, v{TT+2*(u+st)+k}")
        st *= 2
    a(f"v_cvt_pk_bf16_f32 v{V_T1}, v{TT}, v{TT+1}")
    a(f"v_lshlrev_b32 v{V_T0}, 2, v{V_L}")
    a(f"ds_write_b32 v{V_T0}, v{V_T1} offset:{L_QB}")
    a("s_waitcnt lgkmcnt(0)")
    a("L_q2:")
    a("s_barrier")
    a(f"v_lshlrev_b32 v{V_T0}, 4, v{V_I}")
    a(f"ds_read_b128 {r4(V_Q)}, v{V_T0} offset:{L_QB}")
    a("s_waitcnt lgkmcnt(0)")
    stamp("q")
    cur[0] = DS
    def treduce(dst):
        R = V_R
        for i in range(8):
            a(f"v_add_f32_dpp v{R+i}, v{R+i}, v{R+i} row_ror:8 row_mask:0xf bank_mask:0x3")
        for i in range(8):
            a(f"v_add_f32_dpp v{R+i}, v{R+i+8}, v{R+i+8} row_ror:8 row_mask:0xf bank_mask:0xc")
        for i in range(4):
            a(f"v_add_f32_dpp v{R+i}, v{R+i}, v{R+i} row_shl:4 row_mask:0xf bank_mask:0x5")
        for i in range(4):
            a(f"v_add_f32_dpp v{R+i}, v{R+i+4}, v{R+i+4} row_shr:4 row_mask:0xf bank_mask:0xa")
        for i in range(2):
            a(f"v_cndmask_b32 v{R+8+i}, v{R+i}, v{R+i+2}, s[{S_MC}:{S_MC+1}]")
            a(f"v_cndmask_b32 v{R+10+i}, v{R+i+2}, v{R+i}, s[{S_MC}:{S_MC+1}]")
        for i in range(2):
            a(f"v_add_f32_dpp v{R+i}, v{R+10+i}, v{R+8+i} quad_perm:[2,3,0,1] {FULL}")
        a(f"v_cndmask_b32 v{R+8}, v{R}, v{R+1}, s[{S_MA}:{S_MA+1}]")
        a(f"v_cndmask_b32 v{R+9}, v{R+1}, v{R}, s[{S_MA}:{S_MA+1}]")
        a(f"v_add_f32_dpp v{dst}, v{R+9}, v{R+8} quad_perm:[1,0,3,2] {FULL}")
    kdone = 0
    while kdone < N:
        nb = 0
        while ("K", kdone) in landed and nb < c["B"]:
            i = kdone; landed.remove(("K", i)); b = slot[("K", i)]
            for d in range(4):
                a(f"v_dot2c_f32_bf16 v{V_R+(i&15)}, v{b+d}, v{V_Q+d}")
            release(("K", i))
            if (i & 15) == 15:
                if i == N - 1: boost()
                treduce(V_S + (i >> 4))
                if i != N - 1:
                    for k in range(16):
                        a(f"v_mov_b32 v{V_R+k}, 0")
            kdone += 1; nb += 1
        if kdone < N: step()
    stamp("K")
    a(f"s_mov_b32 s{S_T1}, {hex(SCALE)}")
    for k in range(2):
        bf16r(V_S + k, V_S + k)
    for k in range(2):
        a(f"v_mul_f32 v{V_S+k}, s{S_T1}, v{V_S+k}")
    for k in range(2):
        bf16r(V_S + k, V_S + k)
    a(f"v_max_f32 v{V_T0}, v{V_S}, v{V_S+1}")
    wred("v_max_f32", [V_T0], [S_T0])
    a(f"v_mov_b32 v{V_T0}, s{S_T0}")
    a(f"ds_write_b32 v{V_W2}, v{V_T0} offset:{L_MX}")
    a("s_waitcnt lgkmcnt(0)")
    a("s_barrier")
    a(f"v_mov_b32 v{V_T0}, 0")
    a(f"ds_read_b128 {r4(V_R)}, v{V_T0} offset:{L_MX}")
    a(f"ds_read_b128 {r4(V_R+4)}, v{V_T0} offset:{L_MX+16}")
    a("s_waitcnt lgkmcnt(0)")
    a(f"v_max3_f32 v{V_MM}, v{V_R}, v{V_R+1}, v{V_R+2}")
    a(f"v_max3_f32 v{V_MM}, v{V_MM}, v{V_R+3}, v{V_R+4}")
    a(f"v_max3_f32 v{V_MM}, v{V_MM}, v{V_R+5}, v{V_R+6}")
    a(f"v_max_f32 v{V_MM}, v{V_MM}, v{V_R+7}")
    a(f"s_mov_b32 s{S_T1}, {hex(LOG2E)}")
    for k in range(2):
        a(f"v_sub_f32 v{V_S+k}, v{V_S+k}, v{V_MM}")
    for k in range(2):
        a(f"v_mul_f32 v{V_S+k}, s{S_T1}, v{V_S+k}")
    for k in range(2):
        a(f"v_exp_f32 v{V_S+k}, v{V_S+k}")
    for k in range(4):
        a(f"v_mov_b32 v{V_ACC+k}, 0")
    for k in range(2):
        a(f"v_cvt_pk_bf16_f32 v{V_C+k}, v{V_S+k}, v{V_S+k}")
    a(f"v_add_f32 v{V_T0}, v{V_S}, v{V_S+1}")
    wred("v_add_f32", [V_T0], [S_T0])
    a(f"v_mov_b32 v{V_T0}, s{S_T0}")
    a(f"ds_write_b32 v{V_W2}, v{V_T0} offset:{L_LW}")
    VPR = V_S
    a(f"v_lshrrev_b32 v{V_T0}, 3, v{V_L}")
    a(f"v_lshlrev_b32 v{V_T0}, 9, v{V_T0}")
    a(f"v_and_b32 v{V_T1}, 7, v{V_L}")
    a(f"v_lshl_add_u32 v{V_T0}, v{V_T1}, 4, v{V_T0}")
    a(f"s_and_b32 s{S_T0}, s{S_W}, 3")
    a(f"s_lshl_b32 s{S_T0}, s{S_T0}, 7")
    a(f"v_add_u32 v{VPR}, s{S_T0}, v{V_T0}")
    vdone = [0]
    def vphase(extra, upto):
        def eat(i):
            gemv_dpp(V_C + (i >> 4), i & 15, ("V", i))
            for f in extra.get(i, []): f()
        while vdone[0] < upto:
            nb = 0
            while vdone[0] < upto and ("V", vdone[0]) in landed and nb < c["B"]:
                landed.remove(("V", vdone[0])); eat(vdone[0]); vdone[0] += 1; nb += 1
            if vdone[0] < upto:
                if nxt[0] < len(seq): step()
                else:
                    eat(vdone[0]); vdone[0] += 1
    def flush_seq():
        while nxt[0] < len(seq):
            t = seq[nxt[0]]; issuers[t[0]](t[1]); nxt[0] += 1
    def ml_publish():
        if c["boost"]: step(DS + 1)
        a("s_waitcnt lgkmcnt(0)")
        a("s_barrier")
        a(f"v_mov_b32 v{V_T0}, 0")
        a(f"ds_read_b128 {r4(SCR)}, v{V_T0} offset:{L_LW}")
        a(f"ds_read_b128 {r4(SCR+4)}, v{V_T0} offset:{L_LW+16}")
        a(f"v_min_u32 v{V_T2}, -2, v{V_MM}")
        a("s_waitcnt lgkmcnt(0)")
        for k in range(4):
            a(f"v_add_f32 v{SCR+k}, v{SCR+k}, v{SCR+4+k}")
        a(f"v_add_f32 v{SCR}, v{SCR}, v{SCR+1}")
        a(f"v_add_f32 v{SCR+2}, v{SCR+2}, v{SCR+3}")
        a(f"v_add_f32 v{V_T3}, v{SCR}, v{SCR+2}")
        a(f"v_min_u32 v{V_T3}, -2, v{V_T3}")
        a(f"buffer_store_dwordx2 {r2(V_T2)}, v{V_SML}, {srd(sWS)}, 0 offen sc1", tag="mlp")
    def publish(lbl):
        stamp("V")
        a(f"ds_write_b128 v{V_W1}, {r4(V_ACC)} offset:{L_OP}")
        a("s_waitcnt lgkmcnt(0)")
        a("s_barrier")
        a(f"ds_read_b128 {r4(SCR)}, v{VPR} offset:{L_OP}")
        a("s_waitcnt lgkmcnt(0)")
        tred4(SCR)
        a(f"v_min_u32 v{SCR}, -2, v{SCR}")
        a(f"buffer_store_dword v{SCR}, v{V_SO}, {srd(sWS)}, 0 offen sc1", tag="pub")
        stamp("pub")
    def ld_cnt():
        a(f"v_and_b32 v{V_T0}, 3, v{V_L}")
        a(f"v_lshlrev_b32 v{V_T0}, 6, v{V_T0}")
        a(f"buffer_load_dword v{V_CNT}, v{V_T0}, {srd(sD)}, 0 offen sc1", tag="cnt")
    def check_cnt(lbl):
        a.wait("cnt")
        a(f"L_cnt{lbl}:")
        a(f"v_cmp_gt_u32 vcc, 64, v{V_CNT}")
        a(f"s_cbranch_vccz L_cntok{lbl}")
        a(f"v_and_b32 v{V_T0}, 3, v{V_L}")
        a(f"v_lshlrev_b32 v{V_T0}, 6, v{V_T0}")
        a.raw(f"buffer_load_dword v{V_CNT}, v{V_T0}, {srd(sD)}, 0 offen sc1")
        a("s_waitcnt vmcnt(0)")
        a(f"s_sub_u32 s{S_SPIN}, s{S_SPIN}, 1")
        a(f"s_cbranch_scc0 L_cnt{lbl}")
        a(f"L_cntok{lbl}:")
    def chk(regs, t=V_T0):
        rs = list(regs)
        if len(rs) == 1:
            a(f"v_cmp_eq_u32 vcc, -1, v{rs[0]}")
            return
        if len(rs) % 2 == 0:
            a(f"v_max_u32 v{t}, v{rs[0]}, v{rs[1]}"); rs = rs[2:]
        else:
            a(f"v_max3_u32 v{t}, v{rs[0]}, v{rs[1]}, v{rs[2]}"); rs = rs[3:]
        while rs:
            a(f"v_max3_u32 v{t}, v{t}, v{rs[0]}, v{rs[1]}"); rs = rs[2:]
        a(f"v_cmp_eq_u32 vcc, -1, v{t}")
    def poll(lbl, loads, regs, first_issued=False):
        if first_issued:
            a(f"s_branch L_pollw{lbl}")
        a(f"L_poll{lbl}:")
        for l in loads: a(l)
        a(f"L_pollw{lbl}:")
        a.wait_all()
        chk(regs)
        a(f"s_cbranch_vccz L_pollok{lbl}")
        if c["sl"].get(lbl): a(f"s_sleep {c['sl'][lbl]}")
        a(f"s_sub_u32 s{S_SPIN}, s{S_SPIN}, 1")
        a(f"s_cbranch_scc0 L_poll{lbl}")
        a(f"L_pollok{lbl}:")
    def ppoll(lbl, mk, sets, reduce, first_issued=False):
        k = len(sets); n = len(mk(sets[0]))
        for i, rs in enumerate(sets):
            if i == 0 and first_issued: continue
            if i < k - 1 or k == 1:
                for l in mk(rs): a(l)
        if k == 1:
            poll(lbl, mk(sets[0]), sets[0], first_issued=True)
            reduce(sets[0]); return
        a(f"L_poll{lbl}:")
        for i in range(k):
            for l in mk(sets[(i + k - 1) % k]): a.raw(l)
            a(f"s_waitcnt vmcnt({n*(k-1)})")
            chk(sets[i])
            a(f"s_cbranch_vccz L_ok{lbl}_{i}")
        a(f"s_sub_u32 s{S_SPIN}, s{S_SPIN}, 1")
        a(f"s_cbranch_scc0 L_poll{lbl}")
        for i in reversed(range(k)):
            a(f"L_ok{lbl}_{i}:")
            reduce(sets[i])
            if i: a(f"s_branch L_pollok{lbl}")
        a(f"L_pollok{lbl}:")
        a.vm = []
    def spoll(lbl, loads, regsets, first_issued=False):
        allr = [r for rs in regsets for r in rs]
        if not first_issued:
            for l in loads: a(l)
        a(f"L_poll{lbl}:")
        a.wait_all()
        chk(allr)
        a(f"s_cbranch_vccz L_pollok{lbl}")
        for u, (l, rs) in enumerate(zip(loads, regsets)):
            chk(rs)
            a(f"s_cbranch_vccz L_sk{lbl}_{u}")
            a.raw(l)
            a(f"L_sk{lbl}_{u}:")
        if c["sls"] and lbl == "F2": a(f"s_sleep {c['sls']}")
        a(f"s_sub_u32 s{S_SPIN}, s{S_SPIN}, 1")
        a(f"s_cbranch_scc0 L_poll{lbl}")
        a("s_waitcnt vmcnt(0)")
        a(f"L_pollok{lbl}:")
    def gate(lbl, load, reg, maxbad, sleep):
        a(f"L_gate{lbl}:")
        a(load)
        a.wait_all()
        a(f"L_gatechk{lbl}:")
        a(f"v_cmp_eq_u32 vcc, -1, v{reg}")
        a(f"s_bcnt1_i32_b64 s{S_T0}, vcc")
        a(f"s_cmp_le_u32 s{S_T0}, {maxbad}")
        a(f"s_cbranch_scc1 L_gateok{lbl}")
        if sleep: a(f"s_sleep {sleep}")
        a(f"s_sub_u32 s{S_SPIN}, s{S_SPIN}, 1")
        a(f"s_cbranch_scc0 L_gate{lbl}")
        a(f"L_gateok{lbl}:")
    def finish(role):
        if c["stamps"]:
            STAMPS[role] = list(stn)
            a("s_waitcnt lgkmcnt(0)")
            a(f"s_lshl_b32 s{S_T0}, s2, 3"); a(f"s_add_u32 s{S_T0}, s{S_T0}, s{S_W}"); a(f"s_lshl_b32 s{S_T0}, s{S_T0}, 7")
            a(f"s_add_u32 s{S_T0}, s{S_T0}, {WS_ST}")
            a(f"v_mov_b32 v{V_T0}, s{S_T0}")
            a(f"v_cmp_eq_u32 vcc, 0, v{V_L}")
            a(f"s_and_saveexec_b64 s[{S_E}:{S_E+1}], vcc")
            for k in range(len(stn)):
                a(f"v_mov_b32 v{V_T2}, s{S_STAMP+2*k}"); a(f"v_mov_b32 v{V_T2+1}, s{S_STAMP+2*k+1}")
                a(f"buffer_store_dwordx2 {r2(V_T2)}, v{V_T0}, {srd(sWS)}, 0 offen offset:{8*k}")
            a(f"v_mov_b32 v{V_T2}, s{S_SPIN}")
            a(f"buffer_store_dword v{V_T2}, v{V_T0}, {srd(sWS)}, 0 offen offset:120")
        a("s_endpgm")
    MT = c["mltile"]; RD = c["RD"]
    fsz = 0 if c["foob"] else 576 * 9216
    sWO, sW1, sW2w, sOUT = 12, sW, sW2, 24
    a(f"s_mov_b32 s14, {0 if c['ooob'] else 4096*1152}"); a(f"s_mov_b32 s15, 0x20000")
    a(f"s_mov_b32 s{sW1}, s16"); a(f"s_mov_b32 s{sW1+1}, s17"); a(f"s_mov_b32 s{sW1+2}, {fsz}"); a(f"s_mov_b32 s{sW1+3}, 0x20000")
    a(f"s_mov_b32 s{sW3}, s18"); a(f"s_mov_b32 s{sW3+1}, s19"); a(f"s_mov_b32 s{sW3+2}, {fsz}"); a(f"s_mov_b32 s{sW3+3}, 0x20000")
    a(f"s_mov_b32 s{sW2}, s20"); a(f"s_mov_b32 s{sW2+1}, s21"); a(f"s_mov_b32 s{sW2+2}, {0 if c['foob'] else 4608*1152}"); a(f"s_mov_b32 s{sW2+3}, 0x20000")
    a(f"s_mov_b32 s{sOUT}, s22"); a(f"s_mov_b32 s{sOUT+1}, s23"); a(f"s_mov_b32 s{sOUT+2}, 1152"); a(f"s_mov_b32 s{sOUT+3}, 0x20000")
    VPF1, VPF2 = V_R + 14, V_R + 15
    a(f"s_mul_i32 s{S_T0}, s{S_W}, 41")
    a(f"v_add_u32 v{V_T0}, s{S_T0}, v{V_L}")
    a(f"v_cmp_gt_u32 vcc, 41, v{V_L}")
    a(f"v_cndmask_b32 v{V_T0}, v{V_OOB}, v{V_T0}, vcc")
    a(f"v_cmp_gt_u32 vcc, 324, v{V_T0}")
    a(f"v_mul_u32_u24 v{V_T1}, 3641, v{V_T0}")
    a(f"v_lshrrev_b32 v{V_T1}, 16, v{V_T1}")
    a(f"v_mul_u32_u24 v{V_T1}, {9216-1152}, v{V_T1}")
    a(f"v_lshlrev_b32 v{V_T0}, 6, v{V_T0}")
    a(f"v_add_u32 v{V_T1}, v{V_T1}, v{V_T0}")
    a(f"v_cndmask_b32 v{VPF1}, v{V_OOB}, v{V_T1}, vcc")
    a(f"v_cndmask_b32 v{VPF2}, v{V_OOB}, v{V_T0}, vcc")
    if c["pfstride"] == 128:
        a(f"v_and_b32 v{V_T0}, 64, v{V_T0}")
        a(f"v_cmp_eq_u32 vcc, 0, v{V_T0}")
        a(f"v_cndmask_b32 v{VPF1}, v{V_OOB}, v{VPF1}, vcc")
        a(f"v_cndmask_b32 v{VPF2}, v{V_OOB}, v{VPF2}, vcc")
    def ldP(t):
        if t == 0 and c["h1w1"]:
            a(f"s_add_u32 s{S_T0}, s{S_J}, 2")
            a(f"s_lshr_b32 s{S_T0}, s{S_T0}, 2")
            a(f"s_sub_u32 s{S_T0}, s{S_J}, s{S_T0}")
            a(f"s_lshl3_add_u32 s{S_T0}, s{S_T0}, s{S_W}")
            a(f"s_mul_i32 s{S_T0}, s{S_T0}, {3*9216}")
            a(f"s_mul_i32 s{S_T1}, s{S_XG}, 1152")
            a(f"s_add_u32 s{S_T0}, s{S_T0}, s{S_T1}")
            a(f"s_and_b32 s{S_T1}, s{S_J}, 3")
            a(f"s_cmp_eq_u32 s{S_T1}, 1")
            a(f"s_cselect_b32 s{S_T1}, 0, 27")
            a(f"v_mul_u32_u24 v{V_T0}, 57, v{V_L}")
            a(f"v_lshrrev_b32 v{V_T0}, 9, v{V_T0}")
            a(f"v_mul_u32_u24 v{V_T0}, {9216-1152}, v{V_T0}")
            a(f"v_cmp_gt_u32 vcc, s{S_T1}, v{V_L}")
            a(f"v_lshl_add_u32 v{V_T0}, v{V_L}, 7, v{V_T0}")
            a(f"v_cndmask_b32 v{V_T0}, v{V_OOB}, v{V_T0}, vcc")
            a(f"buffer_load_dword v{SCR+8+t}, v{V_T0}, {srd(sW1)}, s{S_T0} offen", tag=("P", t))
        elif t in (0, 1):
            a(f"s_mul_i32 s{S_T0}, s{S_J}, {18*9216}")
            a(f"s_mul_i32 s{S_T1}, s{S_XG}, 1152")
            a(f"s_add_u32 s{S_T0}, s{S_T0}, s{S_T1}")
            a(f"buffer_load_dword v{SCR+8+t}, v{VPF1}, {srd(sW1 if t == 0 else sW3)}, s{S_T0} offen", tag=("P", t))
        elif t == 2 and c["h1skip"]:
            a(f"s_add_u32 s{S_T0}, s{S_J}, 2")
            a(f"s_lshr_b32 s{S_T0}, s{S_T0}, 2")
            a(f"s_sub_u32 s{S_T0}, s{S_J}, s{S_T0}")
            a(f"s_mul_i32 s{S_T1}, s{S_XG}, 24")
            a(f"s_add_u32 s{S_T0}, s{S_T0}, s{S_T1}")
            a(f"s_lshl3_add_u32 s{S_T0}, s{S_T0}, s{S_W}")
            a(f"s_mul_i32 s{S_T0}, s{S_T0}, 3072")
            a(f"s_and_b32 s{S_T1}, s{S_J}, 3")
            a(f"s_cmp_eq_u32 s{S_T1}, 1")
            a(f"s_cselect_b32 s{S_T1}, 0, 24")
            a(f"v_cmp_gt_u32 vcc, s{S_T1}, v{V_L}")
            a(f"v_lshlrev_b32 v{V_T0}, 7, v{V_L}")
            a(f"v_cndmask_b32 v{V_T0}, v{V_OOB}, v{V_T0}, vcc")
            a(f"buffer_load_dword v{SCR+8+t}, v{V_T0}, {srd(sWO)}, s{S_T0} offen", tag=("P", t))
        elif t == 2:
            a(f"s_lshl_b32 s{S_T0}, s{S_XG}, 5")
            a(f"s_add_u32 s{S_T0}, s{S_T0}, s{S_J}")
            a(f"s_mul_i32 s{S_T0}, s{S_T0}, 18432")
            a(f"v_cmp_gt_u32 vcc, 18432, v{VPF2}")
            a(f"v_cndmask_b32 v{V_T0}, v{V_OOB}, v{VPF2}, vcc")
            a(f"buffer_load_dword v{SCR+8+t}, v{V_T0}, {srd(sWO)}, s{S_T0} offen", tag=("P", t))
        else:
            a(f"s_lshl_b32 s{S_T0}, s{S_XG}, 5")
            a(f"s_add_u32 s{S_T0}, s{S_T0}, s{S_J}")
            a(f"s_mul_i32 s{S_T0}, s{S_T0}, 20736")
            a(f"buffer_load_dword v{SCR+8+t}, v{VPF2}, {srd(sW2)}, s{S_T0} offen", tag=("P", t))
    issuers["P"] = ldP
    pl = ([2, 0, 1] if c["pfw"] else []) + ([3] if c["pf2"] else [])
    for t in c["latep"]:
        pl.remove(t); seq.append(("P", t))
    for n_, t in enumerate(pl):
        seq.insert(max(nxt[0], seq.index(("V", c["pfat"] + c["pfgap"] * n_))), ("P", t))
    exm = {MT: [ml_publish], MT - 7: [ld_cnt], MT - 1: [lambda: check_cnt("C")]}
    if c["nosig"]: exm.pop(MT - 7); exm.pop(MT - 1)
    if c["noml"]: exm.pop(MT)
    vphase(exm, RD)
    a(f"s_cmp_lt_u32 s{S_J}, 9")
    a("s_cbranch_scc1 L_roleO")
    a(f"s_cmp_lt_u32 s{S_J}, 27")
    a("s_cbranch_scc1 L_roleF")
    st0 = (list(a.vm), list(free), dict(slot), nxt[0], list(stn), list(landed), list(seq), vdone[0], wtd[0])
    def restore():
        a.vm = list(st0[0]); free[:] = st0[1]; slot.clear(); slot.update(st0[2]); nxt[0] = st0[3]; stn[:] = st0[4]
        landed[:] = st0[5]; seq[:] = st0[6]; vdone[0] = st0[7]; wtd[0] = st0[8]

    vphase({}, N)
    publish("N")
    finish("N")

    restore()
    a("L_roleO:")
    VO = V_R; VP = V_R + 1; VML = V_R + 2; VY = V_R + 3; VZ = V_R + 4; VOUT = V_R + 5; VYS = V_R + 6; VZ4 = V_R + 7
    VCW = V_R + 8; VCR = V_R + 9; VYW = V_R + 10; VYR = V_R + 11
    S_VAL = S_MA
    a(f"v_and_b32 v{V_T0}, 0x1f8, v0")
    a(f"v_lshlrev_b32 v{VCR}, 2, v{V_T0}")
    a(f"s_lshl_b32 s{S_T0}, s{S_XG}, 9")
    a(f"v_add_u32 v{V_T0}, s{S_T0}, v{V_T0}")
    a(f"v_mul_u32_u24 v{V_T0}, 1152, v{V_T0}")
    a(f"v_and_b32 v{V_T1}, 7, v{V_L}")
    a(f"v_lshl_add_u32 v{VO}, v{V_T1}, 4, v{V_T0}")
    a(f"s_lshl_b32 s{S_OQ}, s{S_J}, 7")
    def ldO(t):
        b = alloc(("O", t))
        a(f"buffer_load_dwordx4 {r4(b)}, v{VO}, {srd(sWO)}, s{S_OQ} offen {polW}", tag=("O", t))
        a(f"s_addk_i32 s{S_OQ}, 1152")
    issuers["O"] = ldO
    for t in range(c["nOpre"]):
        seq.append(("O", t))
    def o_setup():
        a(f"s_lshr_b32 s{S_T0}, s{S_W}, 1")
        a(f"s_lshl2_add_u32 s{S_T0}, s{S_XG}, s{S_T0}")
        a(f"s_lshl_b32 s{S_T1}, s{S_T0}, 12")
        a(f"v_and_b32 v{V_T0}, 127, v0")
        a(f"v_lshl_add_u32 v{VP}, v{V_T0}, 2, s{S_T1}")
        a(f"s_lshl_b32 s{S_T1}, s{S_T0}, 7")
        a(f"s_add_u32 s{S_T1}, s{S_T1}, {WS_ML}")
        a(f"v_and_b32 v{V_T0}, 7, v{V_L}")
        a(f"v_lshl_add_u32 v{VML}, v{V_T0}, 4, s{S_T1}")
        a(f"v_bfe_u32 v{V_T1}, v{V_L}, 3, 1")
        a(f"v_lshl_add_u32 v{VML}, v{V_T1}, 2, v{VML}")
        a(f"v_lshlrev_b32 v{VCW}, 2, v0")
        a(f"v_lshrrev_b32 v{V_T1}, 3, v{V_I}")
        a(f"v_lshrrev_b32 v{V_T2}, 1, v{V_G}")
        a(f"v_cmp_eq_u32 s[{S_VAL}:{S_VAL+1}], v{V_T1}, v{V_T2}")
        a(f"v_lshrrev_b32 v{V_T1}, 3, v{V_L}")
        a(f"v_lshlrev_b32 v{V_T1}, 8, v{V_T1}")
        a(f"v_lshl_add_u32 v{V_T1}, v{V_T0}, 4, v{V_T1}")
        a(f"s_and_b32 s{S_T0}, s{S_W}, 1")
        a(f"s_lshl_b32 s{S_T0}, s{S_T0}, 7")
        a(f"v_add_u32 v{VYR}, s{S_T0}, v{V_T1}")
        a(f"s_add_u32 s{S_T0}, s{S_T0}, s{S_M}")
        a(f"v_add_u32 v{V_T1}, s{S_T0}, v{V_X}")
        a(f"v_and_b32 v{V_T2}, 0x1a0, v0")
        a(f"v_cmp_eq_u32 vcc, 0, v{V_T2}")
        a(f"v_cndmask_b32 v{VYS}, v{V_OOB}, v{V_T1}, vcc")
        a(f"v_and_b32 v{V_T0}, 1, v{V_L}")
        a(f"v_bfe_u32 v{V_T1}, v{V_L}, 3, 1")
        a(f"v_bfe_u32 v{V_T2}, v{V_L}, 2, 1")
        a(f"v_lshl_add_u32 v{V_T1}, v{V_T1}, 1, v{V_T2}")
        a(f"v_lshl_add_u32 v{V_T0}, v{V_T0}, 2, v{V_T1}")
        a(f"s_lshl_b32 s{S_T0}, s{S_IDX}, 3")
        a(f"v_add_u32 v{V_T0}, s{S_T0}, v{V_T0}")
        a(f"v_lshlrev_b32 v{VOUT}, 1, v{V_T0}")
        a(f"buffer_load_ushort v{V_X}, v{VOUT}, {srd(sX)}, 0 offen", tag="xr")
        a(f"v_bfe_u32 v{V_T1}, v{V_L}, 1, 1")
        a(f"v_lshl_add_u32 v{V_T1}, v{V_G}, 1, v{V_T1}")
        a(f"v_mul_u32_u24 v{V_T1}, 2304, v{V_T1}")
        a(f"v_lshl_add_u32 v{V_T1}, v{V_T0}, 2, v{V_T1}")
        a(f"v_add_u32 v{VY}, {WS_Y}, v{V_T1}")
        if c["zt"]:
            a(f"v_lshlrev_b32 v{V_T0}, 4, v{V_L}")
            a(f"s_mul_i32 s{S_T0}, s{S_IDX}, 4608")
        else:
            a(f"v_lshrrev_b32 v{V_T0}, 1, v{V_L}")
            a(f"v_mul_u32_u24 v{V_T0}, 2304, v{V_T0}")
            a(f"v_and_b32 v{V_T1}, 1, v{V_L}")
            a(f"v_lshl_add_u32 v{V_T0}, v{V_T1}, 4, v{V_T0}")
            a(f"s_lshl_b32 s{S_T0}, s{S_IDX}, 5")
        a(f"s_add_u32 s{S_T0}, s{S_T0}, {WS_Z}")
        a(f"v_add_u32 v{VZ}, s{S_T0}, v{V_T0}")
        a(f"v_cmp_gt_u32 vcc, 32, v{V_L}")
        a(f"v_and_b32 v{V_T0}, 0x32, v{V_L}")
        a(f"v_cndmask_b32 v{VZ4}, v{V_OOB}, v{VZ}, vcc")
        a(f"v_cmp_eq_u32 vcc, 0, v{V_T0}")
        zs = 1024 if c["zt"] else 32 * 2304
        a(f"s_mov_b32 s4, {zs}"); a(f"s_mov_b32 s5, {2*zs}"); a(f"s_mov_b32 s6, {3*zs}"); a(f"s_mov_b32 s7, {4*zs}")
        a(f"v_cndmask_b32 v{VOUT}, v{V_OOB}, v{VOUT}, vcc")
    vphase({RD: [o_setup]}, N)
    publish("O")
    flush_seq()
    for t in range(c["nOpre"], 8): ldO(t)
    P = [alloc(("p", u)) for u in range(3)]
    regs = [P[0] + k for k in range(4)] + [P[1] + k for k in range(4)]
    sets = []
    for q_ in range(c["k1"]):
        b0, b1 = alloc(("ps", q_, 0)), alloc(("ps", q_, 1))
        sets.append([b0 + k for k in range(4)] + [b1 + k for k in range(4)])
    mk1 = lambda rs: [f"buffer_load_dword v{rs[s_]}, v{VP}, {srd(sWS)}, 0 offen offset:{512*s_} sc1" for s_ in range(8)]
    Mv, Lv = P[2], P[2] + 1
    mlload = f"buffer_load_dword v{Mv}, v{VML}, {srd(sWS)}, 0 offen sc1"
    a("L_mlp:")
    a(mlload, tag="ml")
    for l in mk1(sets[0]): a(l)
    a.wait("ml")
    chk([Mv])
    a("s_cbranch_vccz L_mlok")
    a("s_waitcnt vmcnt(0)")
    a(f"s_sub_u32 s{S_SPIN}, s{S_SPIN}, 1")
    a("s_cbranch_scc0 L_mlp")
    a("L_mlok:")
    a(f"v_mov_b32_dpp v{Lv}, v{Mv} row_ror:8 {FULL}")
    WT = V_T4
    a(f"v_max_f32_dpp v{WT}, v{Mv}, v{Mv} quad_perm:[1,0,3,2] {FULL}")
    a(f"v_max_f32_dpp v{WT}, v{WT}, v{WT} quad_perm:[2,3,0,1] {FULL}")
    a(f"v_max_f32_dpp v{WT}, v{WT}, v{WT} row_half_mirror {FULL}")
    a(f"s_mov_b32 s{S_T1}, {hex(LOG2E)}")
    a(f"v_sub_f32 v{WT}, v{Mv}, v{WT}")
    a(f"v_mul_f32 v{WT}, s{S_T1}, v{WT}")
    a(f"v_exp_f32 v{WT}, v{WT}")
    for k in range(4):
        a(f"v_mov_b32 v{V_ACC+k}, 0")
    a(f"v_mul_f32 v{V_T1}, v{WT}, v{Lv}")
    a(f"v_add_f32_dpp v{V_T1}, v{V_T1}, v{V_T1} quad_perm:[1,0,3,2] {FULL}")
    a(f"v_add_f32_dpp v{V_T1}, v{V_T1}, v{V_T1} quad_perm:[2,3,0,1] {FULL}")
    a(f"v_add_f32_dpp v{V_T1}, v{V_T1}, v{V_T1} row_half_mirror {FULL}")
    a(f"v_rcp_f32 v{V_T1}, v{V_T1}")
    a(f"v_mul_f32 v{WT}, v{WT}, v{V_T1}")
    def red1(rs):
        a(f"v_mul_f32_dpp v{V_T1}, v{WT}, v{rs[0]} row_newbcast:0 {FULL}")
        for s_ in range(1, 8):
            a(f"v_fmac_f32_dpp v{V_T1}, v{WT}, v{rs[s_]} row_newbcast:{s_} {FULL}")
    if c["sel1"]:
        spoll("O1", mk1(sets[0]), [[r] for r in sets[0]], first_issued=True); red1(sets[0])
    else:
        ppoll("O1", mk1, sets, red1, first_issued=True)
    stamp("got1")
    a(f"v_cvt_pk_bf16_f32 v{V_T1}, v{V_T1}, v{V_T1}")
    a(f"ds_write_b32 v{VCW}, v{V_T1} offset:{L_OC}")
    a(f"ds_read_b128 {r4(P[0])}, v{VCR} offset:{L_OC}")
    a(f"ds_read_b128 {r4(P[1])}, v{VCR} offset:{L_OC+16}")
    a("s_waitcnt lgkmcnt(0)")
    A2 = [V_A, SCR]
    for t in range(8):
        A = A2[t & 1]
        for d in range(4):
            a(f"v_and_b32 v{A+d}, v{regs[t]}, v{V_M+d}")
        if t: a(f"v_mfma_f32_16x16x32_bf16 {r4(V_ACC)}, {r4(A2[(t-1)&1])}, {r4(slot[('O', t-1)])}, {r4(V_ACC)}")
    a(f"v_mfma_f32_16x16x32_bf16 {r4(V_ACC)}, {r4(A2[1])}, {r4(slot[('O', 7)])}, {r4(V_ACC)}")
    a(f"s_mov_b64 exec, s[{S_VAL}:{S_VAL+1}]")
    a(f"ds_write_b128 v{V_W1}, {r4(V_ACC)} offset:{L_YP}")
    a(f"s_mov_b64 exec, -1")
    a(f"s_cmp_gt_u32 s{S_W}, 2")
    a("s_waitcnt lgkmcnt(0)")
    a("s_barrier")
    a("s_cbranch_scc1 L_Oend")
    a(f"s_cmp_eq_u32 s{S_W}, 2")
    a("s_cbranch_scc1 L_R")
    a(f"ds_read_b128 {r4(SCR)}, v{VYR} offset:{L_YP}")
    a(f"ds_read_b128 {r4(SCR+4)}, v{VYR} offset:{L_YP+2048}")
    a("s_waitcnt lgkmcnt(0)")
    for k in range(4):
        a(f"v_add_f32 v{SCR+k}, v{SCR+k}, v{SCR+4+k}")
    tred4(SCR)
    a(f"v_min_u32 v{SCR}, -2, v{SCR}")
    a(f"buffer_store_dword v{SCR}, v{VYS}, {srd(sWS)}, 0 offen sc1", tag="ypub")
    stamp("ypub")
    sv = list(stn)
    a("s_branch L_Oend")
    a("L_R:")
    T = [alloc(("t", u)) for u in range(2)]
    poll("O2", [f"buffer_load_dword v{P[2]}, v{VY}, {srd(sWS)}, 0 offen sc1"], [P[2]])
    def red_b1b4b5(r):
        a(f"v_add_f32_dpp v{r}, v{r}, v{r} quad_perm:[2,3,0,1] {FULL}")
        a(f"v_mov_b32 v{V_T1}, v{r}")
        a(f"v_permlane16_swap_b32 v{r}, v{V_T1}")
        a(f"v_add_f32 v{r}, v{r}, v{V_T1}")
        a(f"v_mov_b32 v{V_T1}, v{r}")
        a(f"v_permlane32_swap_b32 v{r}, v{V_T1}")
        a(f"v_add_f32 v{r}, v{r}, v{V_T1}")
    H = P[2]
    red_b1b4b5(H)
    bf16r(H, H)
    a(f"v_lshlrev_b32 v{V_X}, 16, v{V_X}")
    a(f"v_add_f32 v{H}, v{H}, v{V_X}")
    bf16r(H, H)
    so = ["0", "s4", "s5", "s6", "s7"]
    sets = []
    for q_ in range(c["k3"]):
        bs = [alloc(("zs", q_, u)) for u in range(5)]
        sets.append([b_ + k for b_ in bs for k in range(4)])
    mk3 = lambda rs: [f"buffer_load_dwordx4 {r4(rs[4*t])}, v{VZ if t < 4 else VZ4}, {srd(sWS)}, {so[t]} offen sc1" for t in range(5)]
    def red3(rs):
        for k in range(4):
            a(f"v_add_f32 v{T[0]+k}, v{rs[k]}, v{rs[4+k]}")
            a(f"v_add_f32 v{T[1]+k}, v{rs[8+k]}, v{rs[12+k]}")
        for k in range(4):
            a(f"v_add_f32 v{T[0]+k}, v{T[0]+k}, v{rs[16+k]}")
        for k in range(4):
            a(f"v_add_f32 v{T[0]+k}, v{T[0]+k}, v{T[1]+k}")
    if c["gate3"]:
        gate("3", f"buffer_load_dword v{T[1]}, v{VZ}, {srd(sWS)}, 0 offen sc1", T[1], c["gate3"], c["gsl3"])
    ppoll("O3", mk3, sets, red3)
    stamp("got3")
    Z = T[0]
    for i in range(2):
        a(f"v_add_f32_dpp v{Z+i}, v{Z+i}, v{Z+i} row_ror:8 row_mask:0xf bank_mask:0x3")
    for i in range(2):
        a(f"v_add_f32_dpp v{Z+i}, v{Z+i+2}, v{Z+i+2} row_ror:8 row_mask:0xf bank_mask:0xc")
    a(f"v_add_f32_dpp v{Z}, v{Z}, v{Z} row_shl:4 row_mask:0xf bank_mask:0x5")
    a(f"v_add_f32_dpp v{Z}, v{Z+1}, v{Z+1} row_shr:4 row_mask:0xf bank_mask:0xa")
    red_b1b4b5(Z)
    bf16r(Z, Z)
    a(f"v_add_f32 v{Z}, v{Z}, v{H}")
    a(f"v_cvt_pk_bf16_f32 v{Z}, v{Z}, v{Z}")
    a(f"buffer_store_short v{Z}, v{VOUT}, {srd(sOUT)}, 0 offen")
    stamp("end")
    a("L_Oend:")
    finish("O")

    restore()
    a("L_roleF:")
    VF1 = V_R; VF2 = V_R + 1; VY = V_R + 2; VZS = V_R + 3; VH0 = V_R + 4; VH1 = V_R + 5; VCS = V_R + 6; VSTW = V_R + 7
    VCR = V_R + 8; VGW = V_R + 9; VGR = V_R + 10; VX0 = V_R + 11; VX1 = V_R + 12; VYB = V_R + 13; VW2R = V_X
    VG64 = V_XS; VHW = V_XS + 2; VHR = V_XS + 3; VGS = V_XS + 4; VZS2 = V_XS + 5; VSTR = V_XS + 6
    S_VAL = S_MA; S_L8 = S_MC; S_E1 = 4
    lg = (lambda n: f"s_waitcnt lgkmcnt({n})") if not c["stamps"] else (lambda n: "s_waitcnt lgkmcnt(0)")
    a(f"v_lshrrev_b32 v{V_T0}, 3, v0")
    a(f"v_mul_u32_u24 v{VCR}, 48, v{V_T0}")
    a(f"v_mul_u32_u24 v{V_T0}, {9*9216}, v{V_T0}")
    a(f"v_and_b32 v{V_T1}, 3, v{V_L}")
    a(f"v_lshl_add_u32 v{VF1}, v{V_T1}, 4, v{V_T0}")
    a(f"s_lshl_b32 s{S_OQ}, s{S_IDX}, 6")
    a(f"s_mov_b32 s{S_E1}, 0xf0f0f0f0"); a(f"s_mov_b32 s{S_E1+1}, 0xf0f0f0f0")
    a(f"v_add_u32 v{VF1}, s{S_OQ}, v{VF1}")
    a(f"v_mov_b32 v{V_T0}, s{sW1}"); a(f"v_mov_b32 v{V_T1}, s{sW3}")
    a(f"v_mov_b32 v{V_T2}, s{sW1+1}"); a(f"v_mov_b32 v{V_T3}, s{sW3+1}")
    a(f"v_cndmask_b32 v{V_T0}, v{V_T0}, v{V_T1}, s[{S_E1}:{S_E1+1}]")
    a(f"v_cndmask_b32 v{V_T2}, v{V_T2}, v{V_T3}, s[{S_E1}:{S_E1+1}]")
    a(f"v_add_co_u32 v{VG64}, vcc, v{V_T0}, v{VF1}")
    a(f"v_addc_co_u32 v{VG64+1}, vcc, 0, v{V_T2}, vcc")
    def ldF(t):
        b = alloc(("F", t))
        if c["foob"]:
            a(f"buffer_load_dwordx4 {r4(b)}, v{VF1}, {srd(sW1)}, 0 offen {polF}", tag=("F", t))
        else:
            a(f"global_load_dwordx4 {r4(b)}, {r2(VG64)}, off {polF}", tag=("F", t))
        if t < 8:
            a(f"v_add_co_u32 v{VG64}, vcc, 9216, v{VG64}")
            a(f"v_addc_co_u32 v{VG64+1}, vcc, 0, v{VG64+1}, vcc")
    def ldD(t):
        a(f"s_mov_b32 m0, s{S_T2}")
        a(f"s_addk_i32 s{S_T2}, 0x2000")
        a(f"buffer_load_dwordx4 v{V_KO if t < 4 else VF2}, {srd(sW2)}, s{S_OK} offen {c['pol2']} lds", tag=("D", t))
        a(f"s_addk_i32 s{S_OK}, 0x2000")
    issuers["F"] = ldF; issuers["D"] = ldD
    late = [("D", t) for t in range(5)] + [("F", t) for t in range(9)]
    if not c["w2first"]: late = late[5:] + late[:5]
    npre = c["nFpre"]
    for t in late[:npre]: seq.append(t)
    def f_setup():
        a(f"v_lshrrev_b32 v{V_T1}, 3, v{V_I}")
        a(f"v_lshrrev_b32 v{V_T2}, 1, v{V_G}")
        a(f"v_cmp_eq_u32 s[{S_VAL}:{S_VAL+1}], v{V_T1}, v{V_T2}")
        a(f"v_bfe_u32 v{V_T2}, v{V_L}, 2, 1")
        a(f"v_lshl_add_u32 v{V_T2}, v{V_T2}, 4, v{V_T1}")
        a(f"v_mul_u32_u24 v{V_T2}, 144, v{V_T2}")
        a(f"v_and_b32 v{V_T3}, 0x70, v{V_W1}")
        a(f"s_mul_i32 s{S_T0}, s{S_W}, 288")
        a(f"v_add3_u32 v{VGW}, v{V_T2}, v{V_T3}, s{S_T0}")
        a(f"v_and_b32 v{V_T2}, 7, v{V_L}")
        a(f"v_lshrrev_b32 v{V_T1}, 5, v{V_L}")
        a(f"v_lshl_add_u32 v{V_T1}, v{V_T1}, 4, v{V_T2}")
        a(f"v_mul_u32_u24 v{V_T1}, 144, v{V_T1}")
        a(f"v_bfe_u32 v{V_T3}, v{V_L}, 3, 2")
        a(f"v_add_u32 v{V_T3}, v{V_W2}, v{V_T3}")
        a(f"v_lshl_add_u32 v{VGR}, v{V_T3}, 2, v{V_T1}")
        a(f"v_lshlrev_b32 v{VHW}, 1, v{V_T3}")
        a(f"v_lshlrev_b32 v{VHR}, 4, v{V_G}")
        a(f"v_lshlrev_b32 v{VSTR}, 3, v{V_T2}")
        a(f"s_mul_i32 s{S_OK}, s{S_IDX}, {32*1152}")
        a(f"s_mul_i32 s{S_T1}, s{S_W}, 144")
        a(f"v_lshrrev_b32 v{V_T1}, 2, v{V_I}")
        a(f"v_lshl_add_u32 v{V_T1}, v{V_G}, 3, v{V_T1}")
        a(f"v_mul_u32_u24 v{V_T1}, 1152, v{V_T1}")
        a(f"v_and_b32 v{V_T3}, 3, v{V_L}")
        a(f"v_lshl_add_u32 v{V_T1}, v{V_T3}, 3, v{V_T1}")
        a(f"v_add_u32 v{VW2R}, s{S_T1}, v{V_T1}")
        a(f"v_cmp_gt_u32 vcc, 0x100, v0")
        a(f"s_lshl_b32 s{S_T2}, s{S_T1}, 1")
        a(f"s_mul_i32 s{S_T0}, s{S_W}, {9*4608}")
        a(f"v_cndmask_b32 v{VF2}, v{V_OOB}, v{V_KO}, vcc")
        a(f"s_add_u32 s{S_T0}, s{S_T0}, {WS_Z}")
        a(f"s_lshl_b32 s19, s{S_IDX}, 5")
        a(f"s_add_u32 s{S_T0}, s{S_T0}, s19")
        a(f"v_lshrrev_b32 v{V_T1}, 3, v{V_L}")
        a(f"v_mul_u32_u24 v{V_T3}, 4608, v{V_T1}")
        a(f"v_lshl_add_u32 v{V_T3}, v{V_T2}, 2, v{V_T3}")
        a(f"v_add_u32 v{VZS}, s{S_T0}, v{V_T3}")
        a(f"v_cmp_gt_u32 s[{S_L8}:{S_L8+1}], 8, v{V_L}")
        a(f"v_add_u32 v{V_T3}, {8*4608}, v{VZS}")
        a(f"v_mul_u32_u24 v{V_T1}, 2304, v{V_T1}")
        a(f"v_cndmask_b32 v{VZS2}, v{V_OOB}, v{V_T3}, s[{S_L8}:{S_L8+1}]")
        a(f"v_lshl_add_u32 v{V_T3}, v{V_L}, 1, s{S_T1}")
        a(f"buffer_load_ushort v{VX0}, v{V_T3}, {srd(sX)}, 0 offen", tag="xf")
        a(f"v_lshl_add_u32 v{V_T3}, v{V_T2}, 1, s{S_T1}")
        a(f"buffer_load_ushort v{VX1}, v{V_T3}, {srd(sX)}, 0 offen offset:128", tag="xf")
        a(f"s_add_u32 s{S_T2}, s{S_T2}, {WS_Y}")
        a(f"v_lshl_add_u32 v{VY}, v{V_L}, 2, s{S_T2}")
        a(f"v_lshl_add_u32 v{V_T1}, v{V_T2}, 2, v{V_T1}")
        a(f"v_add_u32 v{VYB}, s{S_T2}, v{V_T1}")
        a(f"s_sub_u32 s{S_T0}, s{S_J}, 9")
        a(f"s_lshl_b32 s{S_T0}, s{S_T0}, 7")
        a(f"s_add_u32 s{S_T0}, s{S_T0}, {WS_Y}")
        a(f"v_cmp_gt_u32 vcc, 64, v0")
        a(f"v_add_u32 v{V_T1}, s{S_T0}, v{V_T1}")
        a(f"s_mul_i32 s{S_T0}, s{S_W}, 384")
        a(f"v_cndmask_b32 v{VGS}, v{V_OOB}, v{V_T1}, vcc")
        a(f"s_add_u32 s{S_T0}, s{S_T0}, {L_HC}")
        a(f"v_mov_b32 v{V_T3}, {L_DUM}")
        a(f"v_mul_u32_u24 v{V_T1}, 57, v{V_L}")
        a(f"v_lshrrev_b32 v{V_T1}, 9, v{V_T1}")
        a(f"v_mad_u32_u24 v{V_T1}, v{V_T1}, 3, v{V_L}")
        a(f"v_lshl_add_u32 v{VH0}, v{V_T1}, 2, s{S_T0}")
        a(f"s_add_u32 s{S_T0}, s{S_T0}, {(64+21)*4}")
        a(f"v_lshl_add_u32 v{VH1}, v{V_T2}, 2, s{S_T0}")
        a(f"v_cmp_eq_u32 vcc, 63, v{V_L}")
        a(f"v_lshlrev_b32 v{V_T1}, 1, v{V_W2}")
        a(f"v_add_u32 v{V_T1}, {L_ST}, v{V_T1}")
        a(f"v_cndmask_b32 v{VSTW}, v{V_T3}, v{V_T1}, vcc")
        a(f"s_lshl_b32 s{S_T2}, s{S_W}, 10")
        a(f"s_add_u32 s{S_T2}, s{S_T2}, {L_W2}")
        a(f"s_mov_b32 s16, {2*2304}"); a(f"s_mov_b32 s17, {4*2304}"); a(f"s_mov_b32 s18, {6*2304}")
    def red8(regs):
        for m in ("quad_perm:[1,0,3,2]", "quad_perm:[2,3,0,1]", "row_half_mirror"):
            for r in regs:
                a(f"v_add_f32_dpp v{r}, v{r}, v{r} {m} {FULL}")
    vphase({RD: [f_setup]}, N)
    publish("F")
    flush_seq()
    for n_, t in enumerate(late):
        if n_ < npre: continue
        if c["fbar"] and n_ == (5 if c["w2first"] else 9): a("s_barrier")
        issuers[t[0]](t[1])
    U = [alloc(("u", u)) for u in range(3)]
    W2 = [alloc(("w2", u)) for u in range(5)]
    DD = [alloc(("dd", u)) for u in range(5)]
    bs = [alloc(("ys", u)) for u in range(3)]
    yr = [bs[u >> 2] + (u & 3) for u in range(9)]
    so = ["0", "s16", "s17", "s18"]
    yl = [f"buffer_load_dword v{yr[8]}, v{VYB}, {srd(sWS)}, 0 offen offset:256 sc1"] + \
        [f"buffer_load_dword v{yr[u]}, v{VY}, {srd(sWS)}, {so[u>>1]} offen offset:{2304*(u&1)} sc1" for u in range(8)]
    gl = f"buffer_load_dword v{U[2]+1}, v{VGS}, {srd(sWS)}, 0 offen sc1"
    a(gl, tag="g2")
    assert not a.pending("xf")
    for d in range(4):
        a(f"v_and_b32 v{SCR+d}, 0x3f803f80, v{V_M+d}")
    a(f"v_lshlrev_b32 v{VX0}, 16, v{VX0}")
    a(f"v_lshlrev_b32 v{VX1}, 16, v{VX1}")
    a(f"s_mov_b32 s{S_T1}, 0xbfb8aa3b")
    a(f"v_mov_b32 v{V_T5}, 0")
    for t in range(9):
        a.wait(("F", t))
        if t in (2, 8): stamp(f"f{t}")
        a(f"v_mfma_f32_16x16x32_bf16 {r4(SCR+4)}, {r4(SCR)}, {r4(slot[('F', t)])}, {r4(SCR+4) if t else 0}")
    a.wait("g2")
    a(f"v_cmp_eq_u32 vcc, -1, v{U[2]+1}")
    a(f"s_bcnt1_i32_b64 s19, vcc")
    a(f"v_mov_b32 v{V_T0}, s19")
    a(f"ds_write_b32 v{V_W2}, v{V_T0} offset:{L_FLAG}")
    a(f"s_mov_b64 exec, s[{S_VAL}:{S_VAL+1}]")
    a(f"ds_write_b128 v{VGW}, {r4(SCR+4)} offset:{L_CP}")
    a(f"s_mov_b64 exec, -1")
    a("s_waitcnt lgkmcnt(0)")
    a("s_barrier")
    a(f"ds_read_b32 v{V_T0}, v{V_T5} offset:{L_FLAG}")
    a(f"ds_read_b32 v{VCS}, v{VGR} offset:{L_CP}")
    a(f"ds_read_b32 v{V_T1}, v{VGR} offset:{L_CP+1152}")
    a(lg(2))
    a(f"v_readfirstlane_b32 s19, v{V_T0}")
    a(f"s_cmp_le_u32 s19, {c['gate2']-1}")
    a("s_cbranch_scc1 L_go2")
    a(f"s_cmp_lg_u32 s{S_W}, 0")
    a("s_cbranch_scc1 L_g2")
    gate("2", gl, U[2] + 1, c["gate2"] - 1, c["gsl2"])
    a("L_g2:")
    a("s_barrier")
    a("L_go2:")
    for l in yl: a(l)
    for t in range(5):
        for h in range(2):
            a(f"ds_read_b64_tr_b16 {r2(W2[t]+2*h)}, v{VW2R} offset:{L_W2+32*t+4*1152*h}")
    a(lg(10))
    a(f"v_add_f32 v{VCS}, v{VCS}, v{V_T1}")
    red8([VCS])
    stamp("w13")
    H0, H1 = V_Q, V_Q + 1
    spoll("F2", yl, [[yr[8]]] + [[r] for r in yr[:8]], first_issued=True)
    a(f"v_add_f32_dpp v{H1}, v{yr[8]}, v{yr[8]} row_ror:8 {FULL}")
    a(f"v_add_f32 v{H0}, v{yr[0]}, v{yr[1]}")
    a(f"v_add_f32 v{H0+2}, v{yr[2]}, v{yr[3]}")
    a(f"v_mov_b32 v{V_T0}, v{H1}")
    a(f"v_add_f32 v{H0+3}, v{yr[4]}, v{yr[5]}")
    a(f"v_add_f32 v{V_T1}, v{yr[6]}, v{yr[7]}")
    stamp("got2")
    a(f"v_permlane16_swap_b32 v{H1}, v{V_T0}")
    a(f"v_add_f32 v{H0}, v{H0}, v{H0+2}")
    a(f"v_add_f32 v{H1}, v{H1}, v{V_T0}")
    a(f"v_add_f32 v{H0+3}, v{H0+3}, v{V_T1}")
    a(f"v_mov_b32 v{V_T0}, v{H1}")
    a(f"v_add_f32 v{H0}, v{H0}, v{H0+3}")
    a(f"v_cvt_pk_bf16_f32 v{H0}, v{H0}, v{H0}")
    a(f"v_permlane32_swap_b32 v{H1}, v{V_T0}")
    a(f"v_and_b32 v{H0}, 0xffff0000, v{H0}")
    a(f"v_add_f32 v{H1}, v{H1}, v{V_T0}")
    a(f"v_add_f32 v{H0}, v{H0}, v{VX0}")
    a(f"v_cvt_pk_bf16_f32 v{H1}, v{H1}, v{H1}")
    a(f"v_cvt_pk_bf16_f32 v{H0}, v{H0}, v{H0}")
    a(f"v_and_b32 v{H1}, 0xffff0000, v{H1}")
    a(f"ds_write_b32 v{VH0}, v{H0}")
    a(f"v_add_f32 v{H1}, v{H1}, v{VX1}")
    a(f"v_cvt_pk_bf16_f32 v{H1}, v{H1}, v{H1}")
    a(f"ds_write_b32 v{VH1}, v{H1}")
    a(f"ds_read_b128 {r4(U[0])}, v{VCR} offset:{L_HC}")
    a(f"ds_read_b128 {r4(U[1])}, v{VCR} offset:{L_HC+16}")
    a(f"ds_read_b32 v{U[2]}, v{VCR} offset:{L_HC+32}")
    S1, S2 = V_T2, V_T3
    a(f"v_and_b32 v{H0}, 0xffff0000, v{H0}")
    a(f"v_and_b32 v{H1}, 0xffff0000, v{H1}")
    a(f"v_cndmask_b32 v{H1}, 0, v{H1}, s[{S_L8}:{S_L8+1}]")
    a(f"v_add_f32 v{S1}, v{H0}, v{H1}")
    a(f"v_mul_f32 v{S2}, v{H0}, v{H0}")
    a(f"v_fmac_f32 v{S2}, v{H1}, v{H1}")
    rs = wred_steps("v_add_f32", [S1, S2])
    for t_ in rs.pop(0): a(t_)
    a("s_waitcnt lgkmcnt(0)")
    cf = [U[0] + k for k in range(4)] + [U[1] + k for k in range(4)] + [U[2]]
    for t in range(9):
        A = A2[t & 1]
        for d in range(4):
            a(f"v_and_b32 v{A+d}, v{cf[t]}, v{V_M+d}")
        if t: a(f"v_mfma_f32_16x16x32_bf16 {r4(V_ACC)}, {r4(A2[(t-1)&1])}, {r4(slot[('F', t-1)])}, {r4(V_ACC) if t > 1 else 0}")
        if rs:
            for t_ in rs.pop(0): a(t_)
        elif t == 5: a(f"ds_write_b64 v{VSTW}, {r2(S1)}")
        elif t == 7:
            a("s_waitcnt lgkmcnt(0)")
            a("s_barrier")
            a(f"ds_read_b64 {r2(S1)}, v{VSTR} offset:{L_ST}")
    a(f"v_mfma_f32_16x16x32_bf16 {r4(V_ACC)}, {r4(A2[0])}, {r4(slot[('F', 8)])}, {r4(V_ACC)}")
    a("s_waitcnt lgkmcnt(0)")
    red8([S1, S2])
    a(f"s_mov_b64 exec, s[{S_VAL}:{S_VAL+1}]")
    a(f"ds_write_b128 v{VGW}, {r4(V_ACC)} offset:{L_GP}")
    a(f"s_mov_b64 exec, -1")
    a(f"v_mul_f32 v{S1}, 0x3ae38e39, v{S1}")
    a(f"v_mul_f32 v{S2}, 0x3ae38e39, v{S2}")
    ln_finish(S1, S2)
    a("s_waitcnt lgkmcnt(0)")
    a("s_barrier")
    stamp("gu")
    G = V_T4
    a(f"ds_read_b32 v{G}, v{VGR} offset:{L_GP}")
    a(f"ds_read_b32 v{V_T1}, v{VGR} offset:{L_GP+1152}")
    a(f"v_mul_f32 v{VCS}, v{VCS}, v{S1}")
    a("s_waitcnt lgkmcnt(0)")
    a(f"v_add_f32 v{G}, v{G}, v{V_T1}")
    red8([G])
    a(f"v_sub_f32 v{G}, v{G}, v{VCS}")
    a(f"v_mul_f32 v{G}, v{G}, v{S2}")
    bf16r(G, G)
    a(f"v_mov_b32 v{V_T1}, v{G}")
    a(f"v_mul_f32 v{V_T0}, s{S_T1}, v{G}")
    a(f"v_exp_f32 v{V_T0}, v{V_T0}")
    a(f"v_permlane32_swap_b32 v{G}, v{V_T1}")
    a(f"v_add_f32 v{V_T0}, 1.0, v{V_T0}")
    a(f"v_rcp_f32 v{V_T0}, v{V_T0}")
    a(f"s_mov_b32 exec_hi, 0")
    a(f"v_mul_f32 v{V_T0}, v{G}, v{V_T0}")
    bf16r(V_T0, V_T0)
    a(f"v_mul_f32 v{V_T0}, v{V_T0}, v{V_T1}")
    a(f"v_cvt_pk_bf16_f32 v{V_T0}, v{V_T0}, v{V_T0}")
    a(f"ds_write_b16 v{VHW}, v{V_T0} offset:{L_HID}")
    a(f"s_mov_b32 exec_hi, -1")
    a("s_waitcnt lgkmcnt(0)")
    a("s_barrier")
    a(f"ds_read_b128 {r4(V_A)}, v{VHR} offset:{L_HID}")
    a("s_waitcnt lgkmcnt(0)")
    for t in (4, 0, 1, 2, 3):
        a(f"v_mfma_f32_16x16x32_bf16 {r4(DD[t])}, {r4(V_A)}, {r4(W2[t])}, 0")
    a(f"v_min_u32 v{DD[4]}, -2, v{DD[4]}")
    a(f"buffer_store_dword v{DD[4]}, v{VZS2}, {srd(sWS)}, 0 offen sc1")
    for t in range(1, 4):
        a(f"v_mov_b32_dpp v{DD[0]}, v{DD[t]} quad_perm:[0,1,2,3] row_mask:{hex(1<<t)} bank_mask:0xf")
    a(f"v_min_u32 v{DD[0]}, -2, v{DD[0]}")
    a(f"buffer_store_dword v{DD[0]}, v{VZS}, {srd(sWS)}, 0 offen sc1")
    stamp("zpub")
    finish("F")

    a("L_done:")
    a("s_endpgm")
    a("L_end:")
    a.raw('.section .rodata,"a"'); a.raw(".p2align 6"); a.raw(f".amdhsa_kernel {NAME}")
    a.raw("  .amdhsa_next_free_vgpr 256"); a.raw("  .amdhsa_next_free_sgpr 102"); a.raw("  .amdhsa_accum_offset 256")
    a.raw("  .amdhsa_group_segment_fixed_size 0"); a.raw("  .amdhsa_kernarg_size 96"); a.raw("  .amdhsa_user_sgpr_count 2")
    a.raw("  .amdhsa_user_sgpr_kernarg_segment_ptr 1"); a.raw("  .amdhsa_system_sgpr_workgroup_id_x 1")
    a.raw(".end_amdhsa_kernel")
    return a.text()

if __name__ == "__main__":
    import ast
    kw = {}
    out = sys.argv[1]
    for s in sys.argv[2:]:
        k, v = s.split("=", 1)
        try: v = ast.literal_eval(v)
        except Exception: pass
        kw[k] = v
    open(out, "w").write(gen(**kw))
```

```python
import sys, os
sys.path.insert(0, "dev")
from asmdsl import Asm

NAME = "sequential_preLN__mha_block_cached__glu_gated_swiglu__decode_kernel"
_ref = "sequential_preLN__mha_block_cached__glu_gated_swiglu__decode.s.ref"
HEADER = open(_ref).read().split("; Override launch")[0] if os.path.exists(_ref) else ""

WS_O, WS_ML, WS_Y, WS_Z, WS_ST = 0, 0x20000, 0x21000, 0x26000, 0x80000
WS_SIZE = 0x100000
OOB = 0x7ffffff0
L_QP, L_QB, L_MX, L_LW, L_TF, L_OP = 0, 4096, 4352, 4384, 4416, 4608
L_OC, L_YP = 8704, 10752
L_ST, L_DUM, L_FLAG, L_HID, L_HC, L_GP, L_CP = 8704, 8832, 8896, 8960, 9216, 12288, 16896
L_W2 = 21504
LDS_SIZE = L_W2 + 40960
LOG2E = 0x3fb8aa3b
SCALE = 0x3db504f3
FULL = "row_mask:0xf bank_mask:0xf"

DEF = dict(qpat=0, spf=0, postp=0, lgok=0, trlate=0, ckw=0, ck=(), theta=28, cklag=2, tf0=0, polout='', ldsx=0, qshift=0, tight=0, twave=0xff, tby=1, gspread=1, h1w1=1, sls=0, latep=(), rot=1, h1skip=1, try1=0, g2lds=0, DSq=5, sel1=1, sel2=1, gate2=9, gsl2=2, gate3=63, gsl3=2, zt=1, sl={'O2': 4}, k1=1, k2=1, k3=1, nosig=0, noclr=0, noml=0, skip=('f2', 'f8', 'b1', 'iss', 'cb'), polllate=0, pat="QKK", B=4, DS=4, polK="nt", polQ="", polW="", polF="", pol2="nt", nFpre=5, nOpre=4, stamps=False, spin=2000000,
           qoob=0, ooob=0, foob=0, cpf=1, mltile=16, lnstep=4, boost=1, fbar=1, clrstep=4, RD=22, pfq=0, pfw=1, pf2=0, pfstride=64, pfat=18, pfgap=2, kpre=0, w2first=1)
STAMPS = {}

def gen(**kw):
    c = dict(DEF); c.update(kw)
    a = Asm()
    N = 32
    DS = c["DS"]
    polK, polQ, polW, polF = c["polK"], c["polQ"], c["polW"], c["polF"]
    sK, sV, sQ, sX, sWS, sW, sW2, sD, sW3 = 28, 32, 36, 40, 44, 48, 52, 56, 8
    def srd(b): return f"s[{b}:{b+3}]"
    S_XG, S_J, S_HEAD, S_SPLIT, S_OK, S_OV, S_OQ, S_IDX, S_T0, S_T1, S_T2, S_SPIN = 60, 61, 62, 63, 64, 65, 66, 67, 68, 69, 70, 71
    S_MA, S_MC, S_E = 72, 74, 76
    S_M = 78; S_W = 3; S_SLOT = 79
    S_STAMP = 80
    S_WT = 4
    stn = []
    def stamp(name):
        if c["stamps"] and name not in c["skip"]:
            k = len(stn); stn.append(name)
            assert k < 10
            a(f"s_memrealtime s[{S_STAMP+2*k}:{S_STAMP+2*k+1}]")
    V_L, V_G, V_I, V_KO, V_QO, V_T0, V_T1, V_T2, V_T3, V_T4, V_T5 = 1, 2, 3, 4, 5, 6, 7, 8, 9, 10, 11
    V_M = 12; V_Q = 16; V_C = 20; V_OOB = 22; V_SML = 23; V_A = 24; V_ACC = 28; V_S = 32
    V_CNT = 34; V_X = 35; V_SO = 36; V_MM = 37; V_W1 = 38; V_W2 = 39
    V_R = 40
    V_XS = 56
    POOL0 = 64; SCR = 240
    free = list(range(POOL0, SCR, 4))
    slot = {}
    def alloc(tag):
        slot[tag] = free.pop(0); return slot[tag]
    def release(tag):
        free.append(slot.pop(tag))
    def r4(b): return f"v[{b}:{b+3}]"
    def r2(b): return f"v[{b}:{b+1}]"
    def bf16r(dst, src):
        a(f"v_cvt_pk_bf16_f32 v{dst}, v{src}, v{src}")
        a(f"v_and_b32 v{dst}, 0xffff0000, v{dst}")
    def wred_steps(op, regs):
        out = []
        for k in (8, 4, 2, 1):
            out.append([f"{op}_dpp v{r}, v{r}, v{r} row_ror:{k} {FULL}" for r in regs])
        out.append([f"{op}_dpp v{r}, v{r}, v{r} row_bcast:15 row_mask:0xa bank_mask:0xf" for r in regs])
        out.append([f"{op}_dpp v{r}, v{r}, v{r} row_bcast:31 row_mask:0xc bank_mask:0xf" for r in regs])
        return out
    def wred(op, regs, sdsts):
        for g in wred_steps(op, regs):
            for t in g: a(t)
        for r, s in zip(regs, sdsts):
            a(f"v_readlane_b32 s{s}, v{r}, 63")
    def ln_finish(vmean, vvar):
        a(f"v_fma_f32 v{vvar}, -v{vmean}, v{vmean}, v{vvar}")
        a(f"v_max_f32 v{vvar}, 0, v{vvar}")
        a(f"v_cvt_pk_bf16_f32 v{vvar}, v{vvar}, v{vvar}")
        a(f"v_cvt_pk_bf16_f32 v{vmean}, v{vmean}, v{vmean}")
        a(f"v_and_b32 v{vvar}, 0xffff0000, v{vvar}")
        a(f"v_add_f32 v{vvar}, 0x3727c5ac, v{vvar}")
        bf16r(vvar, vvar)
        a(f"v_sqrt_f32 v{vvar}, v{vvar}")
        a(f"v_and_b32 v{vmean}, 0xffff0000, v{vmean}")
        bf16r(vvar, vvar)
        a(f"v_rcp_f32 v{vvar}, v{vvar}")
    def tred4(Z):
        for i in range(2):
            a(f"v_add_f32_dpp v{Z+i}, v{Z+i}, v{Z+i} row_ror:8 row_mask:0xf bank_mask:0x3")
        for i in range(2):
            a(f"v_add_f32_dpp v{Z+i}, v{Z+i+2}, v{Z+i+2} row_ror:8 row_mask:0xf bank_mask:0xc")
        a(f"v_permlane16_swap_b32 v{Z}, v{Z+1}")
        a(f"v_add_f32 v{Z}, v{Z}, v{Z+1}")
        a(f"v_mov_b32 v{Z+1}, v{Z}")
        a(f"v_permlane32_swap_b32 v{Z}, v{Z+1}")
        a(f"v_add_f32 v{Z}, v{Z}, v{Z+1}")

    a.raw(HEADER.rstrip())
    a.raw(f"; @launch grid=(256,1,1) block=(512,1,1) lds={LDS_SIZE + c['ldsx']}")
    a.raw('.amdgcn_target "amdgcn-amd-amdhsa--gfx950"')
    a.raw(".text"); a.raw(f".globl {NAME}"); a.raw(".p2align 8"); a.raw(f".type {NAME},@function"); a.raw(f"{NAME}:")
    a("L_start:")
    a(f"s_load_dwordx2 s[{sK}:{sK+1}], s[0:1], 8")
    a(f"s_load_dwordx2 s[{sX}:{sX+1}], s[0:1], 0")
    a(f"s_load_dwordx2 s[{sQ}:{sQ+1}], s[0:1], 24")
    a("s_cmp_ge_u32 s2, 256")
    a("s_cbranch_scc1 L_done")
    stamp("start")
    a(f"s_and_b32 s{S_XG}, s2, 7")
    a(f"s_lshr_b32 s{S_J}, s2, 3")
    a(f"s_and_b32 s{S_T0}, s{S_J}, 3")
    a(f"s_lshl2_add_u32 s{S_HEAD}, s{S_XG}, s{S_T0}")
    a(f"s_lshr_b32 s{S_SPLIT}, s2, 5")
    a(f"s_lshl3_add_u32 s{S_SLOT}, s{S_HEAD}, s{S_SPLIT}")
    a(f"s_lshl_b32 s{S_OK}, s{S_SLOT}, 18")
    a(f"v_lshlrev_b32 v{V_KO}, 4, v0")
    a(f"s_mov_b32 s{sK+2}, 0x4000000")
    a(f"s_mov_b32 s{sK+3}, 0x20000")
    a(f"s_mov_b32 s{S_OV}, s{S_OK}")
    a("s_waitcnt lgkmcnt(0)")

    def ldK(i):
        b = alloc(("K", i))
        a(f"buffer_load_dwordx4 {r4(b)}, v{V_KO}, {srd(sK)}, s{S_OK} offen {polK}", tag=("K", i))
        if i < N - 1: a(f"s_addk_i32 s{S_OK}, 0x2000")
    def ldV(i):
        b = alloc(("V", i))
        a(f"buffer_load_dwordx4 {r4(b)}, v{V_KO}, {srd(sV)}, s{S_OV} offen {polK}", tag=("V", i))
        if i < N - 1: a(f"s_addk_i32 s{S_OV}, 0x2000")
    def spf(tile):
        if tile < 18:
            a(f"s_load_dword s100, s[24:25], s26")
            a(f"s_add_u32 s26, s26, 0x40000")
    def ldQ(i):
        if c["spf"]: spf(i + c["spf"])
        b = alloc(("Q", i))
        a(f"buffer_load_dwordx4 {r4(b)}, v{V_QO}, {srd(sQ)}, s{S_OQ} offen {polQ}", tag=("Q", i))
        if i < 17 and c["qpat"]:
            a(f"s_addk_i32 s{S_OQ}, 0x2000")
        elif i < 17:
            a(f"s_add_u32 s{S_OQ}, s{S_OQ}, 0x40000")
            if c["rot"]:
                a(f"s_cmp_eq_u32 s{S_OQ}, 0x480000")
                a(f"s_cselect_b32 s{S_OQ}, 0, s{S_OQ}")
    seq = [("K", i) for i in range(DS + c["kpre"])]
    ki = DS + c["kpre"]; qi = 0; pat = c["pat"]; p = 0
    while qi < 18:
        ch = pat[p % len(pat)]; p += 1
        if ch == "Q": seq.append(("Q", qi)); qi += 1
        elif ki < N: seq.append(("K", ki)); ki += 1
    while ki < N:
        seq.append(("K", ki)); ki += 1
    for i in range(N): seq.append(("V", i))
    issuers = {"K": ldK, "V": ldV, "Q": ldQ}
    nxt = [0]; landed = []; wtd = [0]; cur = [DS]; tightok = [False]; tn = [0]; S_TF = 101
    def step(depth=None):
        d = cur[0] if depth is None else depth
        k = nxt[0]
        upto = min(k - d, len(seq) - 1)
        if upto >= wtd[0]:
            a.wait(seq[upto])
            while wtd[0] <= upto:
                landed.append(seq[wtd[0]]); wtd[0] += 1
            if (c["tight"] or c["ck"]) and tightok[0] and k < len(seq) and upto + c["tby"] < k and seq[upto + c["tby"]] in a.vm:
                idx = max(i for i, t in enumerate(a.vm) if t == seq[upto + c["tby"]])
                tn[0] += 1
                a(f"s_bitcmp0_b32 s{S_TF}, 0")
                a(f"s_cbranch_scc1 L_t{tn[0]}")
                a(f"s_waitcnt vmcnt({len(a.vm) - 1 - idx})")
                a(f"L_t{tn[0]}:")
        if k < len(seq):
            t = seq[k]; issuers[t[0]](t[1])
        nxt[0] += 1
        for f in hooks.pop(k, []): f()
    hooks = {}
    V_RK, V_RA = 62, 63
    def ck_hooks():
        for n_, k0 in enumerate(c["ck"]):
            def issue(n_=n_, k0=k0):
                if c["ckw"]: a.wait(seq[k0 + 1 - (DS - c["tby"])])
                a(f"v_mov_b32 v{V_RK}, 1")
                u_ = uid()
                a(f"s_cmp_lg_u32 s{S_W}, 0")
                a(f"s_cbranch_scc1 L_ra{u_}")
                a(f"s_mov_b64 exec, 1")
                a.raw(f"buffer_atomic_add v{V_RK}, v{V_RA}, {srd(sD)}, 0 offen offset:{4*(n_+1)} sc0 sc1")
                a(f"s_mov_b64 exec, -1")
                a(f"s_branch L_rb{u_}")
                a(f"L_ra{u_}:")
                a(f"buffer_load_dword v{V_RK}, v{V_OOB}, {srd(sD)}, 0 offen", tag=("rk", n_))
                a(f"L_rb{u_}:")
            def got(n_=n_):
                a.wait(("rk", n_))
                a(f"s_cmp_lg_u32 s{S_W}, 0")
                a(f"s_cbranch_scc1 L_rk{n_}_{uid()}")
                a(f"v_mov_b32 v{V_T0}, 0")
                a(f"s_mov_b64 exec, 1")
                a(f"ds_write_b32 v{V_T0}, v{V_RK} offset:{L_TF}")
                a(f"s_mov_b64 exec, -1")
                a(f"L_rk{n_}_{uidc[0]}:")
            def rd(n_=n_):
                a(f"v_mov_b32 v{V_T0}, 0")
                a(f"ds_read_b32 v{V_RK}, v{V_T0} offset:{L_TF}")
            def use(n_=n_):
                a("s_waitcnt lgkmcnt(0)")
                a(f"v_readfirstlane_b32 s{S_TF}, v{V_RK}")
                a(f"s_cmp_lt_u32 s{S_TF}, {c['theta']}")
                a(f"s_cselect_b32 s{S_TF}, 1, 0")
            hooks.setdefault(k0, []).append(issue)
            hooks.setdefault(k0 + DS + 1, []).append(got)
            hooks.setdefault(k0 + DS + 1 + c["cklag"], []).append(rd)
            hooks.setdefault(k0 + DS + 2 + c["cklag"], []).append(use)
    uidc = [0]
    def uid():
        uidc[0] += 1; return uidc[0]
    def boost():
        for u in range(c["boost"]): step(cur[0] + 1 + u)
    for _ in range(DS): step()
    a(f"s_load_dwordx2 s[{sV}:{sV+1}], s[0:1], 16")
    a(f"s_load_dwordx2 s[{sWS}:{sWS+1}], s[0:1], 88")
    a(f"s_load_dwordx2 s[{sD}:{sD+1}], s[0:1], 80")
    a("s_load_dwordx2 s[12:13], s[0:1], 32")
    a("s_load_dwordx8 s[16:23], s[0:1], 48")
    a(f"v_and_b32 v{V_L}, 63, v0")
    a(f"s_mov_b32 s{sX+2}, 1152"); a(f"s_mov_b32 s{sX+3}, 0x20000")
    a(f"v_lshlrev_b32 v{V_T5}, 3, v{V_L}")
    a(f"v_and_b32 v{V_I}, 15, v0")
    a(f"v_lshrrev_b32 v{V_T1}, 4, v0")
    for t in range(3):
        a(f"buffer_load_dwordx2 {r2(V_XS+2*t)}, v{V_T5}, {srd(sX)}, 0 offen offset:{512*t}", tag="xs")
    if c["qpat"]:
        a(f"v_mul_u32_u24 v{V_T1}, 18, v{V_T1}")
        a(f"v_add_lshl_u32 v{V_T3}, v{V_I}, v{V_T1}, 1")
        a(f"buffer_load_ushort v{V_XS+6}, v{V_T3}, {srd(sX)}, 0 offen", tag="xc")
        a(f"buffer_load_ushort v{V_XS+7}, v{V_T3}, {srd(sX)}, 0 offen offset:32", tag="xc")
        a(f"v_lshlrev_b32 v{V_QO}, 13, v{V_T1}")
        a(f"s_lshl_b32 s{S_OQ}, s{S_HEAD}, 8")
        a(f"v_lshl_add_u32 v{V_QO}, v{V_I}, 4, v{V_QO}")
    elif c["rot"]:
        a(f"s_mul_i32 s{S_T1}, s{S_SPLIT}, 9")
        a(f"s_lshr_b32 s{S_T1}, s{S_T1}, 2")
        a(f"v_add_u32 v{V_T2}, s{S_T1}, v{V_I}")
        for k in range(2):
            if k: a(f"v_add_u32 v{V_T2}, 16, v{V_T2}")
            a(f"v_subrev_u32 v{V_T3}, 18, v{V_T2}")
            a(f"v_min_u32 v{V_T3}, v{V_T2}, v{V_T3}")
            a(f"v_lshl_add_u32 v{V_T3}, v{V_T3}, 5, v{V_T1}")
            a(f"v_lshlrev_b32 v{V_T3}, 1, v{V_T3}")
            a(f"buffer_load_ushort v{V_XS+6+k}, v{V_T3}, {srd(sX)}, 0 offen", tag="xc")
        a(f"v_lshlrev_b32 v{V_QO}, 13, v{V_T1}")
        a(f"s_lshl_b32 s{S_OQ}, s{S_T1}, 18")
        a(f"s_lshl_b32 s{S_T0}, s{S_HEAD}, 8")
        a(f"v_lshl_add_u32 v{V_QO}, v{V_I}, 4, v{V_QO}")
        a(f"v_add_u32 v{V_QO}, s{S_T0}, v{V_QO}")
    else:
        a(f"v_lshl_add_u32 v{V_T3}, v{V_I}, 5, v{V_T1}")
        a(f"v_lshlrev_b32 v{V_T3}, 1, v{V_T3}")
        a(f"buffer_load_ushort v{V_XS+6}, v{V_T3}, {srd(sX)}, 0 offen", tag="xc")
        a(f"buffer_load_ushort v{V_XS+7}, v{V_T3}, {srd(sX)}, 0 offen offset:1024", tag="xc")
        a(f"v_lshlrev_b32 v{V_QO}, 13, v{V_T1}")
        a(f"s_lshl_b32 s{S_OQ}, s{S_HEAD}, 8")
        a(f"v_lshl_add_u32 v{V_QO}, v{V_I}, 4, v{V_QO}")
    if c["qshift"]: a(f"v_xor_b32 v{V_QO}, {c['qshift']}, v{V_QO}")
    a(f"s_mov_b32 s{sQ+2}, {0 if c['qoob'] else 576*8192}"); a(f"s_mov_b32 s{sQ+3}, 0x20000")
    a(f"v_mov_b32 v{V_OOB}, {hex(OOB)}")
    a(f"v_lshrrev_b32 v{V_T0}, 6, v0")
    a(f"v_lshrrev_b32 v{V_G}, 4, v{V_L}")
    a(f"v_readfirstlane_b32 s{S_W}, v{V_T0}")
    if c["pfq"]:
        a(f"v_mad_u32_u24 v{V_T2}, v{V_T0}, 36, v{V_L}")
        a(f"v_lshrrev_b32 v{V_T3}, 4, v{V_T2}")
        a(f"v_and_b32 v{V_T2}, 15, v{V_T2}")
        a(f"v_lshlrev_b32 v{V_T3}, 13, v{V_T3}")
        a(f"v_lshl_add_u32 v{V_T2}, v{V_T2}, 6, v{V_T3}")
        a(f"v_cmp_gt_u32 vcc, 36, v{V_L}")
        a(f"s_mul_i32 s{S_T0}, s{S_J}, {18*8192}")
        a(f"s_lshl_b32 s{S_T1}, s{S_XG}, 10")
        a(f"v_cndmask_b32 v{V_T2}, v{V_OOB}, v{V_T2}, vcc")
        a(f"s_add_u32 s{S_T0}, s{S_T0}, s{S_T1}")
        a(f"buffer_load_dword v{SCR+4}, v{V_T2}, {srd(sQ)}, s{S_T0} offen", tag="pfq")
    if c["spf"]:
        assert not c["rot"]
        a(f"s_lshr_b32 s{S_T0}, s{S_SPLIT}, 1")
        a(f"s_lshl2_add_u32 s{S_T0}, s{S_W}, s{S_T0}")
        a(f"s_lshl_b32 s{S_T0}, s{S_T0}, 13")
        a(f"s_and_b32 s{S_T1}, s{S_SPLIT}, 1")
        a(f"s_lshl1_add_u32 s{S_T1}, s{S_HEAD}, s{S_T1}")
        a(f"s_lshl_b32 s{S_T1}, s{S_T1}, 7")
        a(f"s_add_u32 s26, s{S_T0}, s{S_T1}")
        a(f"s_mov_b32 s24, s{sQ}"); a(f"s_mov_b32 s25, s{sQ+1}")
        a("s_waitcnt lgkmcnt(0)")
        for t in range(c["spf"]): spf(t)
    if c["cpf"]:
        a("s_getpc_b64 s[4:5]")
        a("L_pc:")
        a(f"s_and_b32 s{S_T0}, s{S_J}, 1")
        a(f"s_lshl_b32 s{S_T0}, s{S_T0}, 13")
        a(f"v_add_u32 v{V_T2}, s{S_T0}, v{V_KO}")
        a(f"v_min_u32 v{V_T2}, L_end-L_pc-16, v{V_T2}")
        a(f"v_mov_b32 v{V_T3}, s5")
        a(f"v_add_co_u32 v{V_T2}, vcc, s4, v{V_T2}")
        a(f"v_addc_co_u32 v{V_T3}, vcc, 0, v{V_T3}, vcc")
        a(f"global_load_dwordx4 {r4(SCR)}, v[{V_T2}:{V_T3}], off", tag="cpf")
    a(f"v_and_b32 v{V_T0}, 1, v{V_L}")
    a(f"v_lshlrev_b32 v{V_T0}, 4, v{V_T0}")
    a(f"v_mov_b32 v{V_T1}, 0xffff")
    a(f"v_lshlrev_b32 v{V_T0}, v{V_T0}, v{V_T1}")
    a(f"v_bfe_u32 v{V_T1}, v{V_L}, 1, 2")
    for d in range(4):
        a(f"v_cmp_eq_u32 s[{4+2*(d&1)}:{5+2*(d&1)}], {d}, v{V_T1}")
        if d: a(f"v_cndmask_b32 v{V_M+d-1}, 0, v{V_T0}, s[{4+2*((d-1)&1)}:{5+2*((d-1)&1)}]")
    a(f"v_cndmask_b32 v{V_M+3}, 0, v{V_T0}, s[6:7]")
    for k in range(4):
        a(f"v_mov_b32 v{V_ACC+k}, 0")
    a(f"v_mov_b32 v{V_T0}, 0"); a(f"v_mov_b32 v{V_T1}, 0"); a(f"v_mov_b32 v{V_T2}, 0x3f803f80")
    if c["tight"]:
        a(f"s_lshr_b32 s{S_TF}, {c['tight']}, s{S_XG}")
        a(f"s_lshr_b32 s{S_T0}, {c['twave']}, s{S_W}")
        a(f"s_and_b32 s{S_TF}, s{S_TF}, s{S_T0}")
        tightok[0] = True
    if c["ck"]:
        a(f"s_mov_b32 s{S_TF}, {c['tf0']}")
        tightok[0] = True
        ck_hooks()
    if c["DSq"]:
        while cur[0] < c["DSq"]:
            cur[0] += 1; step()
    for _ in range(c["lnstep"]): step()
    a.wait("xc")
    for t in range(6):
        a(f"v_dot2c_f32_bf16 v{V_T0}, v{V_XS+t}, v{V_T2}")
        a(f"v_dot2c_f32_bf16 v{V_T1}, v{V_XS+t}, v{V_XS+t}")
    wred("v_add_f32", [V_T0, V_T1], [S_T0, S_T1])
    a(f"v_mov_b32 v{V_T1}, 0x3ae38e39")
    a(f"v_mul_f32 v{V_T0}, s{S_T0}, v{V_T1}")
    a(f"v_mul_f32 v{V_T1}, s{S_T1}, v{V_T1}")
    ln_finish(V_T0, V_T1)
    for k in range(2):
        a(f"v_lshlrev_b32 v{V_C+k}, 16, v{V_XS+6+k}")
    for k in range(2):
        a(f"v_sub_f32 v{V_C+k}, v{V_C+k}, v{V_T0}")
    for k in range(2):
        bf16r(V_C + k, V_C + k)
    for k in range(2):
        a(f"v_mul_f32 v{V_C+k}, v{V_C+k}, v{V_T1}")
    for k in range(2):
        a(f"v_cvt_pk_bf16_f32 v{V_C+k}, v{V_C+k}, v{V_C+k}")
    stamp("ln")
    def gemv_dpp(coef, i, tag):
        for d in range(4):
            a(f"v_and_b32_dpp v{V_A+d}, v{coef}, v{V_M+d} row_newbcast:{i} {FULL}")
        a.wait(tag)
        a(f"v_mfma_f32_16x16x32_bf16 {r4(V_ACC)}, {r4(V_A)}, {r4(slot[tag])}, {r4(V_ACC)}")
        release(tag)
    def clear_setup():
        if not c["spf"]: a("s_waitcnt lgkmcnt(0)")
        for b, n in ((sV, 0x4000000), (sWS, WS_SIZE), (sD, 256)):
            a(f"s_mov_b32 s{b+2}, {hex(n)}")
            a(f"s_mov_b32 s{b+3}, 0x20000")
        a(f"s_mul_i32 s{S_T0}, s{S_XG}, 9")
        a(f"s_add_u32 s{S_T1}, s{S_T0}, s{S_J}")
        a(f"s_add_u32 s{S_T0}, s{S_T0}, s{S_T1}")
        a(f"s_sub_u32 s{S_T0}, s{S_T0}, 9")
        a(f"s_cmp_lt_u32 s{S_J}, 9")
        a(f"s_cselect_b32 s{S_IDX}, s{S_T1}, s{S_T0}")
        a(f"s_movk_i32 s{S_T0}, 2304")
        a(f"s_mov_b32 s{S_T1}, {WS_Z}")
        a(f"s_cselect_b32 s{S_T0}, 0x100, s{S_T0}")
        a(f"s_cselect_b32 s{S_T1}, {WS_Y}, s{S_T1}")
        a(f"s_mul_i32 s{S_T0}, s{S_T0}, s{S_IDX}")
        a(f"s_add_u32 s{S_M}, s{S_T0}, s{S_T1}")
        a(f"v_cmp_gt_u32 vcc, 128, v0")
        a(f"s_lshl_b32 s{S_T0}, s2, 11")
        for k in range(4):
            a(f"v_mov_b32 v{V_R+k}, -1")
        a(f"v_cndmask_b32 v{V_T0}, v{V_OOB}, v{V_KO}, vcc")
        if not c["noclr"]: a(f"buffer_store_dwordx4 {r4(V_R)}, v{V_T0}, {srd(sWS)}, s{S_T0} offen sc1", tag="clr")
        a(f"s_lshl4_add_u32 s{S_T1}, s{S_SLOT}, {WS_ML}")
        a(f"v_mov_b32 v{V_SML}, s{S_T1}")
        a(f"v_cmp_eq_u32 vcc, {3*64+32}, v0")
        a(f"s_lshl_b32 s{S_T0}, s{S_SLOT}, 9")
        a(f"v_cndmask_b32 v{V_SML}, v{V_OOB}, v{V_SML}, vcc")
        a(f"v_and_b32 v{V_T0}, 7, v{V_L}")
        a(f"v_bfe_u32 v{V_T1}, v{V_L}, 3, 1")
        a(f"v_lshl_add_u32 v{V_T0}, v{V_T0}, 1, v{V_T1}")
        a(f"v_bfe_u32 v{V_T1}, v{V_L}, 4, 1")
        a(f"v_lshl_add_u32 v{V_T0}, v{V_T0}, 1, v{V_T1}")
        a(f"v_lshlrev_b32 v{V_X}, 2, v{V_T0}")
        a(f"s_lshl_b32 s{S_T1}, s{S_W}, 7")
        a(f"s_add_u32 s{S_T0}, s{S_T0}, s{S_T1}")
        a(f"v_add_u32 v{V_T0}, s{S_T0}, v{V_X}")
        a(f"v_and_b32 v{V_T1}, 0x120, v0")
        a(f"v_cmp_eq_u32 vcc, 0, v{V_T1}")
        a(f"s_mov_b32 s{S_MA}, 0xaaaaaaaa"); a(f"s_mov_b32 s{S_MA+1}, 0xaaaaaaaa")
        a(f"v_cndmask_b32 v{V_SO}, v{V_OOB}, v{V_T0}, vcc")
        a(f"s_mov_b32 s{S_MC}, 0xcccccccc"); a(f"s_mov_b32 s{S_MC+1}, 0xcccccccc")
        a(f"v_and_b32 v{V_T0}, 1, v{V_G}")
        a(f"v_lshlrev_b32 v{V_T0}, 4, v{V_T0}")
        a(f"v_lshl_add_u32 v{V_T0}, v{V_I}, 5, v{V_T0}")
        a(f"s_lshl_b32 s{S_T0}, s{S_W}, 9")
        a(f"v_add_u32 v{V_W1}, s{S_T0}, v{V_T0}")
        a(f"s_lshl_b32 s{S_T1}, s{S_W}, 2")
        a(f"v_mov_b32 v{V_W2}, s{S_T1}")
        a(f"s_mov_b32 s{S_SPIN}, {c['spin']}")
        if c["ck"]:
            a(f"s_and_b32 s{S_T0}, s{S_J}, 3")
            a(f"s_lshl_b32 s{S_T0}, s{S_T0}, 6")
            a(f"v_mov_b32 v{V_T1}, s{S_T0}")
            a(f"v_cmp_eq_u32 vcc, 0, v0")
            a(f"v_mov_b32 v{V_T0}, 0")
            a(f"v_mov_b32 v{V_T2}, {0 if c['tf0'] else 64}")
            a(f"v_cndmask_b32 v{V_RA}, v{V_OOB}, v{V_T1}, vcc")
            a(f"ds_write_b32 v{V_T0}, v{V_T2} offset:{L_TF}")
    def signal():
        assert not a.pending("clr")
        a("s_barrier")
        a(f"v_cmp_eq_u32 vcc, 0, v0")
        a(f"s_and_b32 s{S_T0}, s2, 3")
        a(f"s_lshl_b32 s{S_T0}, s{S_T0}, 6")
        a(f"v_mov_b32 v{V_T2}, s{S_T0}")
        a(f"v_cndmask_b32 v{V_T1}, v{V_OOB}, v{V_T2}, vcc")
        a(f"v_mov_b32 v{V_T2}, 1")
        if not c["nosig"]: a(f"buffer_atomic_add v{V_T2}, v{V_T1}, {srd(sD)}, 0 offen sc1", tag="sig")
    qdone = 0; ns = 0
    while qdone < 18:
        while ("Q", qdone) in landed:
            landed.remove(("Q", qdone))
            gemv_dpp(V_C + (qdone >> 4), qdone & 15, ("Q", qdone)); qdone += 1
        if ns == c["clrstep"]: clear_setup()
        if ns == c["clrstep"] + cur[0] + 1: signal()
        ns += 1
        if qdone < 18: step()
    assert ns > c["clrstep"] + cur[0] + 1
    boost()
    a(f"ds_write_b128 v{V_W1}, {r4(V_ACC)} offset:{L_QP}")
    for k in range(16):
        a(f"v_mov_b32 v{V_R+k}, 0")
    a("s_waitcnt lgkmcnt(0)")
    a("s_barrier")
    a(f"s_cmp_lg_u32 s{S_W}, 0")
    a("s_cbranch_scc1 L_q2")
    a(f"v_lshlrev_b32 v{V_T0}, 3, v{V_L}")
    TT = SCR
    for u in range(8):
        a(f"ds_read_b64 {r2(TT+2*u)}, v{V_T0} offset:{L_QP+512*u}")
    a("s_waitcnt lgkmcnt(0)")
    st = 1
    while st < 8:
        for u in range(0, 8, 2 * st):
            for k in range(2):
                a(f"v_add_f32 v{TT+2*u+k}, v{TT+2*u+k}, v{TT+2*(u+st)+k}")
        st *= 2
    a(f"v_cvt_pk_bf16_f32 v{V_T1}, v{TT}, v{TT+1}")
    a(f"v_lshlrev_b32 v{V_T0}, 2, v{V_L}")
    a(f"ds_write_b32 v{V_T0}, v{V_T1} offset:{L_QB}")
    a("s_waitcnt lgkmcnt(0)")
    a("L_q2:")
    a("s_barrier")
    a(f"v_lshlrev_b32 v{V_T0}, 4, v{V_I}")
    a(f"ds_read_b128 {r4(V_Q)}, v{V_T0} offset:{L_QB}")
    a("s_waitcnt lgkmcnt(0)")
    stamp("q")
    cur[0] = DS
    def treduce(dst):
        R = V_R
        for i in range(8):
            a(f"v_add_f32_dpp v{R+i}, v{R+i}, v{R+i} row_ror:8 row_mask:0xf bank_mask:0x3")
        for i in range(8):
            a(f"v_add_f32_dpp v{R+i}, v{R+i+8}, v{R+i+8} row_ror:8 row_mask:0xf bank_mask:0xc")
        for i in range(4):
            a(f"v_add_f32_dpp v{R+i}, v{R+i}, v{R+i} row_shl:4 row_mask:0xf bank_mask:0x5")
        for i in range(4):
            a(f"v_add_f32_dpp v{R+i}, v{R+i+4}, v{R+i+4} row_shr:4 row_mask:0xf bank_mask:0xa")
        for i in range(2):
            a(f"v_cndmask_b32 v{R+8+i}, v{R+i}, v{R+i+2}, s[{S_MC}:{S_MC+1}]")
            a(f"v_cndmask_b32 v{R+10+i}, v{R+i+2}, v{R+i}, s[{S_MC}:{S_MC+1}]")
        for i in range(2):
            a(f"v_add_f32_dpp v{R+i}, v{R+10+i}, v{R+8+i} quad_perm:[2,3,0,1] {FULL}")
        a(f"v_cndmask_b32 v{R+8}, v{R}, v{R+1}, s[{S_MA}:{S_MA+1}]")
        a(f"v_cndmask_b32 v{R+9}, v{R+1}, v{R}, s[{S_MA}:{S_MA+1}]")
        a(f"v_add_f32_dpp v{dst}, v{R+9}, v{R+8} quad_perm:[1,0,3,2] {FULL}")
    kdone = 0
    while kdone < N:
        nb = 0
        while ("K", kdone) in landed and nb < c["B"]:
            i = kdone; landed.remove(("K", i)); b = slot[("K", i)]
            for d in range(4):
                a(f"v_dot2c_f32_bf16 v{V_R+(i&15)}, v{b+d}, v{V_Q+d}")
            release(("K", i))
            if (i & 15) == 15:
                if i == N - 1: boost()
                treduce(V_S + (i >> 4))
                if i != N - 1:
                    for k in range(16):
                        a(f"v_mov_b32 v{V_R+k}, 0")
            kdone += 1; nb += 1
        if kdone < N: step()
    stamp("K")
    a(f"s_mov_b32 s{S_T1}, {hex(SCALE)}")
    for k in range(2):
        bf16r(V_S + k, V_S + k)
    for k in range(2):
        a(f"v_mul_f32 v{V_S+k}, s{S_T1}, v{V_S+k}")
    for k in range(2):
        bf16r(V_S + k, V_S + k)
    a(f"v_max_f32 v{V_T0}, v{V_S}, v{V_S+1}")
    wred("v_max_f32", [V_T0], [S_T0])
    a(f"v_mov_b32 v{V_T0}, s{S_T0}")
    a(f"ds_write_b32 v{V_W2}, v{V_T0} offset:{L_MX}")
    a("s_waitcnt lgkmcnt(0)")
    a("s_barrier")
    a(f"v_mov_b32 v{V_T0}, 0")
    a(f"ds_read_b128 {r4(V_R)}, v{V_T0} offset:{L_MX}")
    a(f"ds_read_b128 {r4(V_R+4)}, v{V_T0} offset:{L_MX+16}")
    a("s_waitcnt lgkmcnt(0)")
    a(f"v_max3_f32 v{V_MM}, v{V_R}, v{V_R+1}, v{V_R+2}")
    a(f"v_max3_f32 v{V_MM}, v{V_MM}, v{V_R+3}, v{V_R+4}")
    a(f"v_max3_f32 v{V_MM}, v{V_MM}, v{V_R+5}, v{V_R+6}")
    a(f"v_max_f32 v{V_MM}, v{V_MM}, v{V_R+7}")
    a(f"s_mov_b32 s{S_T1}, {hex(LOG2E)}")
    for k in range(2):
        a(f"v_sub_f32 v{V_S+k}, v{V_S+k}, v{V_MM}")
    for k in range(2):
        a(f"v_mul_f32 v{V_S+k}, s{S_T1}, v{V_S+k}")
    for k in range(2):
        a(f"v_exp_f32 v{V_S+k}, v{V_S+k}")
    for k in range(4):
        a(f"v_mov_b32 v{V_ACC+k}, 0")
    for k in range(2):
        a(f"v_cvt_pk_bf16_f32 v{V_C+k}, v{V_S+k}, v{V_S+k}")
    a(f"v_add_f32 v{V_T0}, v{V_S}, v{V_S+1}")
    wred("v_add_f32", [V_T0], [S_T0])
    a(f"v_mov_b32 v{V_T0}, s{S_T0}")
    a(f"ds_write_b32 v{V_W2}, v{V_T0} offset:{L_LW}")
    VPR = V_S
    a(f"v_lshrrev_b32 v{V_T0}, 3, v{V_L}")
    a(f"v_lshlrev_b32 v{V_T0}, 9, v{V_T0}")
    a(f"v_and_b32 v{V_T1}, 7, v{V_L}")
    a(f"v_lshl_add_u32 v{V_T0}, v{V_T1}, 4, v{V_T0}")
    a(f"s_and_b32 s{S_T0}, s{S_W}, 3")
    a(f"s_lshl_b32 s{S_T0}, s{S_T0}, 7")
    a(f"v_add_u32 v{VPR}, s{S_T0}, v{V_T0}")
    vdone = [0]
    def vphase(extra, upto):
        def eat(i):
            gemv_dpp(V_C + (i >> 4), i & 15, ("V", i))
            for f in extra.get(i, []): f()
        while vdone[0] < upto:
            nb = 0
            while vdone[0] < upto and ("V", vdone[0]) in landed and nb < c["B"]:
                landed.remove(("V", vdone[0])); eat(vdone[0]); vdone[0] += 1; nb += 1
            if vdone[0] < upto:
                if nxt[0] < len(seq): step()
                else:
                    eat(vdone[0]); vdone[0] += 1
    def flush_seq():
        while nxt[0] < len(seq):
            t = seq[nxt[0]]; issuers[t[0]](t[1]); nxt[0] += 1
    def ml_publish():
        if c["boost"]: step(DS + 1)
        a("s_waitcnt lgkmcnt(0)")
        a("s_barrier")
        a(f"v_mov_b32 v{V_T0}, 0")
        a(f"ds_read_b128 {r4(SCR)}, v{V_T0} offset:{L_LW}")
        a(f"ds_read_b128 {r4(SCR+4)}, v{V_T0} offset:{L_LW+16}")
        a(f"v_min_u32 v{V_T2}, -2, v{V_MM}")
        a("s_waitcnt lgkmcnt(0)")
        for k in range(4):
            a(f"v_add_f32 v{SCR+k}, v{SCR+k}, v{SCR+4+k}")
        a(f"v_add_f32 v{SCR}, v{SCR}, v{SCR+1}")
        a(f"v_add_f32 v{SCR+2}, v{SCR+2}, v{SCR+3}")
        a(f"v_add_f32 v{V_T3}, v{SCR}, v{SCR+2}")
        a(f"v_min_u32 v{V_T3}, -2, v{V_T3}")
        a(f"buffer_store_dwordx2 {r2(V_T2)}, v{V_SML}, {srd(sWS)}, 0 offen sc1", tag="mlp")
    def publish(lbl):
        stamp("V")
        a(f"ds_write_b128 v{V_W1}, {r4(V_ACC)} offset:{L_OP}")
        a("s_waitcnt lgkmcnt(0)")
        a("s_barrier")
        a(f"ds_read_b128 {r4(SCR)}, v{VPR} offset:{L_OP}")
        a("s_waitcnt lgkmcnt(0)")
        tred4(SCR)
        a(f"v_min_u32 v{SCR}, -2, v{SCR}")
        a(f"buffer_store_dword v{SCR}, v{V_SO}, {srd(sWS)}, 0 offen sc1", tag="pub")
        stamp("pub")
    def ld_cnt():
        a(f"v_and_b32 v{V_T0}, 3, v{V_L}")
        a(f"v_lshlrev_b32 v{V_T0}, 6, v{V_T0}")
        a(f"buffer_load_dword v{V_CNT}, v{V_T0}, {srd(sD)}, 0 offen sc1", tag="cnt")
    def check_cnt(lbl):
        a.wait("cnt")
        a(f"L_cnt{lbl}:")
        a(f"v_cmp_gt_u32 vcc, 64, v{V_CNT}")
        a(f"s_cbranch_vccz L_cntok{lbl}")
        a(f"v_and_b32 v{V_T0}, 3, v{V_L}")
        a(f"v_lshlrev_b32 v{V_T0}, 6, v{V_T0}")
        a.raw(f"buffer_load_dword v{V_CNT}, v{V_T0}, {srd(sD)}, 0 offen sc1")
        a("s_waitcnt vmcnt(0)")
        a(f"s_sub_u32 s{S_SPIN}, s{S_SPIN}, 1")
        a(f"s_cbranch_scc0 L_cnt{lbl}")
        a(f"L_cntok{lbl}:")
    def chk(regs, t=V_T0):
        rs = list(regs)
        if len(rs) == 1:
            a(f"v_cmp_eq_u32 vcc, -1, v{rs[0]}")
            return
        if len(rs) % 2 == 0:
            a(f"v_max_u32 v{t}, v{rs[0]}, v{rs[1]}"); rs = rs[2:]
        else:
            a(f"v_max3_u32 v{t}, v{rs[0]}, v{rs[1]}, v{rs[2]}"); rs = rs[3:]
        while rs:
            a(f"v_max3_u32 v{t}, v{t}, v{rs[0]}, v{rs[1]}"); rs = rs[2:]
        a(f"v_cmp_eq_u32 vcc, -1, v{t}")
    def poll(lbl, loads, regs, first_issued=False):
        if first_issued:
            a(f"s_branch L_pollw{lbl}")
        a(f"L_poll{lbl}:")
        for l in loads: a(l)
        a(f"L_pollw{lbl}:")
        a.wait_all()
        chk(regs)
        a(f"s_cbranch_vccz L_pollok{lbl}")
        if c["sl"].get(lbl): a(f"s_sleep {c['sl'][lbl]}")
        a(f"s_sub_u32 s{S_SPIN}, s{S_SPIN}, 1")
        a(f"s_cbranch_scc0 L_poll{lbl}")
        a(f"L_pollok{lbl}:")
    def ppoll(lbl, mk, sets, reduce, first_issued=False):
        k = len(sets); n = len(mk(sets[0]))
        for i, rs in enumerate(sets):
            if i == 0 and first_issued: continue
            if i < k - 1 or k == 1:
                for l in mk(rs): a(l)
        if k == 1:
            poll(lbl, mk(sets[0]), sets[0], first_issued=True)
            reduce(sets[0]); return
        a(f"L_poll{lbl}:")
        for i in range(k):
            for l in mk(sets[(i + k - 1) % k]): a.raw(l)
            a(f"s_waitcnt vmcnt({n*(k-1)})")
            chk(sets[i])
            a(f"s_cbranch_vccz L_ok{lbl}_{i}")
        a(f"s_sub_u32 s{S_SPIN}, s{S_SPIN}, 1")
        a(f"s_cbranch_scc0 L_poll{lbl}")
        for i in reversed(range(k)):
            a(f"L_ok{lbl}_{i}:")
            reduce(sets[i])
            if i: a(f"s_branch L_pollok{lbl}")
        a(f"L_pollok{lbl}:")
        a.vm = []
    def spoll(lbl, loads, regsets, first_issued=False):
        allr = [r for rs in regsets for r in rs]
        if not first_issued:
            for l in loads: a(l)
        a(f"L_poll{lbl}:")
        a.wait_all()
        chk(allr)
        a(f"s_cbranch_vccz L_pollok{lbl}")
        for u, (l, rs) in enumerate(zip(loads, regsets)):
            chk(rs)
            a(f"s_cbranch_vccz L_sk{lbl}_{u}")
            a.raw(l)
            a(f"L_sk{lbl}_{u}:")
        if c["sls"] and lbl == "F2": a(f"s_sleep {c['sls']}")
        a(f"s_sub_u32 s{S_SPIN}, s{S_SPIN}, 1")
        a(f"s_cbranch_scc0 L_poll{lbl}")
        a("s_waitcnt vmcnt(0)")
        a(f"L_pollok{lbl}:")
    def gate(lbl, load, reg, maxbad, sleep):
        a(f"L_gate{lbl}:")
        a(load)
        a.wait_all()
        a(f"L_gatechk{lbl}:")
        a(f"v_cmp_eq_u32 vcc, -1, v{reg}")
        a(f"s_bcnt1_i32_b64 s{S_T0}, vcc")
        a(f"s_cmp_le_u32 s{S_T0}, {maxbad}")
        a(f"s_cbranch_scc1 L_gateok{lbl}")
        if sleep: a(f"s_sleep {sleep}")
        a(f"s_sub_u32 s{S_SPIN}, s{S_SPIN}, 1")
        a(f"s_cbranch_scc0 L_gate{lbl}")
        a(f"L_gateok{lbl}:")
    def finish(role):
        if c["stamps"]:
            STAMPS[role] = list(stn)
            a("s_waitcnt lgkmcnt(0)")
            a(f"s_lshl_b32 s{S_T0}, s2, 3"); a(f"s_add_u32 s{S_T0}, s{S_T0}, s{S_W}"); a(f"s_lshl_b32 s{S_T0}, s{S_T0}, 7")
            a(f"s_add_u32 s{S_T0}, s{S_T0}, {WS_ST}")
            a(f"v_mov_b32 v{V_T0}, s{S_T0}")
            a(f"v_cmp_eq_u32 vcc, 0, v{V_L}")
            a(f"s_and_saveexec_b64 s[{S_E}:{S_E+1}], vcc")
            for k in range(len(stn)):
                a(f"v_mov_b32 v{V_T2}, s{S_STAMP+2*k}"); a(f"v_mov_b32 v{V_T2+1}, s{S_STAMP+2*k+1}")
                a(f"buffer_store_dwordx2 {r2(V_T2)}, v{V_T0}, {srd(sWS)}, 0 offen offset:{8*k}")
            a(f"v_mov_b32 v{V_T2}, s{S_SPIN}")
            a(f"buffer_store_dword v{V_T2}, v{V_T0}, {srd(sWS)}, 0 offen offset:120")
        a("s_endpgm")
    MT = c["mltile"]; RD = c["RD"]
    fsz = 0 if c["foob"] else 576 * 9216
    sWO, sW1, sW2w, sOUT = 12, sW, sW2, 24
    a(f"s_mov_b32 s14, {0 if c['ooob'] else 4096*1152}"); a(f"s_mov_b32 s15, 0x20000")
    a(f"s_mov_b32 s{sW1}, s16"); a(f"s_mov_b32 s{sW1+1}, s17"); a(f"s_mov_b32 s{sW1+2}, {fsz}"); a(f"s_mov_b32 s{sW1+3}, 0x20000")
    a(f"s_mov_b32 s{sW3}, s18"); a(f"s_mov_b32 s{sW3+1}, s19"); a(f"s_mov_b32 s{sW3+2}, {fsz}"); a(f"s_mov_b32 s{sW3+3}, 0x20000")
    a(f"s_mov_b32 s{sW2}, s20"); a(f"s_mov_b32 s{sW2+1}, s21"); a(f"s_mov_b32 s{sW2+2}, {0 if c['foob'] else 4608*1152}"); a(f"s_mov_b32 s{sW2+3}, 0x20000")
    a(f"s_mov_b32 s{sOUT}, s22"); a(f"s_mov_b32 s{sOUT+1}, s23"); a(f"s_mov_b32 s{sOUT+2}, 1152"); a(f"s_mov_b32 s{sOUT+3}, 0x20000")
    VPF1, VPF2 = V_R + 14, V_R + 15
    a(f"s_mul_i32 s{S_T0}, s{S_W}, 41")
    a(f"v_add_u32 v{V_T0}, s{S_T0}, v{V_L}")
    a(f"v_cmp_gt_u32 vcc, 41, v{V_L}")
    a(f"v_cndmask_b32 v{V_T0}, v{V_OOB}, v{V_T0}, vcc")
    a(f"v_cmp_gt_u32 vcc, 324, v{V_T0}")
    a(f"v_mul_u32_u24 v{V_T1}, 3641, v{V_T0}")
    a(f"v_lshrrev_b32 v{V_T1}, 16, v{V_T1}")
    a(f"v_mul_u32_u24 v{V_T1}, {9216-1152}, v{V_T1}")
    a(f"v_lshlrev_b32 v{V_T0}, 6, v{V_T0}")
    a(f"v_add_u32 v{V_T1}, v{V_T1}, v{V_T0}")
    a(f"v_cndmask_b32 v{VPF1}, v{V_OOB}, v{V_T1}, vcc")
    a(f"v_cndmask_b32 v{VPF2}, v{V_OOB}, v{V_T0}, vcc")
    if c["pfstride"] == 128:
        a(f"v_and_b32 v{V_T0}, 64, v{V_T0}")
        a(f"v_cmp_eq_u32 vcc, 0, v{V_T0}")
        a(f"v_cndmask_b32 v{VPF1}, v{V_OOB}, v{VPF1}, vcc")
        a(f"v_cndmask_b32 v{VPF2}, v{V_OOB}, v{VPF2}, vcc")
    def ldP(t):
        if t == 0 and c["h1w1"]:
            a(f"s_add_u32 s{S_T0}, s{S_J}, 2")
            a(f"s_lshr_b32 s{S_T0}, s{S_T0}, 2")
            a(f"s_sub_u32 s{S_T0}, s{S_J}, s{S_T0}")
            a(f"s_lshl3_add_u32 s{S_T0}, s{S_T0}, s{S_W}")
            a(f"s_mul_i32 s{S_T0}, s{S_T0}, {3*9216}")
            a(f"s_mul_i32 s{S_T1}, s{S_XG}, 1152")
            a(f"s_add_u32 s{S_T0}, s{S_T0}, s{S_T1}")
            a(f"s_and_b32 s{S_T1}, s{S_J}, 3")
            a(f"s_cmp_eq_u32 s{S_T1}, 1")
            a(f"s_cselect_b32 s{S_T1}, 0, 27")
            a(f"v_mul_u32_u24 v{V_T0}, 57, v{V_L}")
            a(f"v_lshrrev_b32 v{V_T0}, 9, v{V_T0}")
            a(f"v_mul_u32_u24 v{V_T0}, {9216-1152}, v{V_T0}")
            a(f"v_cmp_gt_u32 vcc, s{S_T1}, v{V_L}")
            a(f"v_lshl_add_u32 v{V_T0}, v{V_L}, 7, v{V_T0}")
            a(f"v_cndmask_b32 v{V_T0}, v{V_OOB}, v{V_T0}, vcc")
            a(f"buffer_load_dword v{SCR+8+t}, v{V_T0}, {srd(sW1)}, s{S_T0} offen", tag=("P", t))
        elif t in (0, 1):
            a(f"s_mul_i32 s{S_T0}, s{S_J}, {18*9216}")
            a(f"s_mul_i32 s{S_T1}, s{S_XG}, 1152")
            a(f"s_add_u32 s{S_T0}, s{S_T0}, s{S_T1}")
            a(f"buffer_load_dword v{SCR+8+t}, v{VPF1}, {srd(sW1 if t == 0 else sW3)}, s{S_T0} offen", tag=("P", t))
        elif t == 2 and c["h1skip"]:
            a(f"s_add_u32 s{S_T0}, s{S_J}, 2")
            a(f"s_lshr_b32 s{S_T0}, s{S_T0}, 2")
            a(f"s_sub_u32 s{S_T0}, s{S_J}, s{S_T0}")
            a(f"s_mul_i32 s{S_T1}, s{S_XG}, 24")
            a(f"s_add_u32 s{S_T0}, s{S_T0}, s{S_T1}")
            a(f"s_lshl3_add_u32 s{S_T0}, s{S_T0}, s{S_W}")
            a(f"s_mul_i32 s{S_T0}, s{S_T0}, 3072")
            a(f"s_and_b32 s{S_T1}, s{S_J}, 3")
            a(f"s_cmp_eq_u32 s{S_T1}, 1")
            a(f"s_cselect_b32 s{S_T1}, 0, 24")
            a(f"v_cmp_gt_u32 vcc, s{S_T1}, v{V_L}")
            a(f"v_lshlrev_b32 v{V_T0}, 7, v{V_L}")
            a(f"v_cndmask_b32 v{V_T0}, v{V_OOB}, v{V_T0}, vcc")
            a(f"buffer_load_dword v{SCR+8+t}, v{V_T0}, {srd(sWO)}, s{S_T0} offen", tag=("P", t))
        elif t == 2:
            a(f"s_lshl_b32 s{S_T0}, s{S_XG}, 5")
            a(f"s_add_u32 s{S_T0}, s{S_T0}, s{S_J}")
            a(f"s_mul_i32 s{S_T0}, s{S_T0}, 18432")
            a(f"v_cmp_gt_u32 vcc, 18432, v{VPF2}")
            a(f"v_cndmask_b32 v{V_T0}, v{V_OOB}, v{VPF2}, vcc")
            a(f"buffer_load_dword v{SCR+8+t}, v{V_T0}, {srd(sWO)}, s{S_T0} offen", tag=("P", t))
        else:
            a(f"s_lshl_b32 s{S_T0}, s{S_XG}, 5")
            a(f"s_add_u32 s{S_T0}, s{S_T0}, s{S_J}")
            a(f"s_mul_i32 s{S_T0}, s{S_T0}, 20736")
            a(f"buffer_load_dword v{SCR+8+t}, v{VPF2}, {srd(sW2)}, s{S_T0} offen", tag=("P", t))
    issuers["P"] = ldP
    pl = ([2, 0, 1] if c["pfw"] else []) + ([3] if c["pf2"] else [])
    if c["postp"]:
        pl.remove(0); pl.remove(1)
    for t in c["latep"]:
        pl.remove(t); seq.append(("P", t))
    VPP = VPF1
    def postp_setup():
        a(f"s_add_u32 s{S_T0}, s{S_J}, 2")
        a(f"s_lshr_b32 s{S_T0}, s{S_T0}, 2")
        a(f"s_sub_u32 s{S_T0}, s{S_J}, s{S_T0}")
        a(f"s_sub_u32 s{S_T0}, s{S_T0}, 7")
        a(f"s_mul_i32 s{S_T0}, s{S_T0}, {34*9216}")
        a(f"s_mul_i32 s{S_T1}, s{S_XG}, 1152")
        a(f"s_add_u32 s27, s{S_T0}, s{S_T1}")
        a(f"s_and_b32 s{S_T1}, s{S_J}, 3")
        a(f"s_cmp_eq_u32 s{S_T1}, 1")
        a(f"s_cselect_b32 s{S_T1}, 0, 39")
        a(f"s_mul_i32 s{S_T0}, s{S_W}, 39")
        a(f"v_add_u32 v{V_T0}, s{S_T0}, v{V_L}")
        a(f"v_mul_u32_u24 v{V_T1}, 7282, v{V_T0}")
        a(f"v_lshrrev_b32 v{V_T1}, 16, v{V_T1}")
        a(f"v_cmp_gt_u32 vcc, s{S_T1}, v{V_L}")
        a(f"v_mul_u32_u24 v{V_T1}, {9216-1152}, v{V_T1}")
        a(f"v_lshl_add_u32 v{V_T1}, v{V_T0}, 7, v{V_T1}")
        a(f"v_cndmask_b32 v{V_T1}, v{V_OOB}, v{V_T1}, vcc")
        a(f"v_cmp_gt_u32 vcc, 306, v{V_T0}")
        a(f"v_cndmask_b32 v{VPP}, v{V_OOB}, v{V_T1}, vcc")
    def postp():
        if c["postp"]:
            a(f"buffer_load_dword v{SCR+8}, v{VPP}, {srd(sW1)}, s27 offen", tag=("P", 0))
            a(f"buffer_load_dword v{SCR+9}, v{VPP}, {srd(sW3)}, s27 offen", tag=("P", 1))
    for n_, t in enumerate(pl):
        seq.insert(max(nxt[0], seq.index(("V", c["pfat"] + c["pfgap"] * n_))), ("P", t))
    exm = {MT: [ml_publish], MT - 7: [ld_cnt], MT - 1: [lambda: check_cnt("C")]}
    if c["nosig"]: exm.pop(MT - 7); exm.pop(MT - 1)
    if c["noml"]: exm.pop(MT)
    vphase(exm, RD)
    a(f"s_cmp_lt_u32 s{S_J}, 9")
    a("s_cbranch_scc1 L_roleO")
    a(f"s_cmp_lt_u32 s{S_J}, 27")
    a("s_cbranch_scc1 L_roleF")
    st0 = (list(a.vm), list(free), dict(slot), nxt[0], list(stn), list(landed), list(seq), vdone[0], wtd[0], {k_: list(v_) for k_, v_ in hooks.items()})
    def restore():
        a.vm = list(st0[0]); free[:] = st0[1]; slot.clear(); slot.update(st0[2]); nxt[0] = st0[3]; stn[:] = st0[4]
        landed[:] = st0[5]; seq[:] = st0[6]; vdone[0] = st0[7]; wtd[0] = st0[8]; hooks.clear(); hooks.update({k_: list(v_) for k_, v_ in st0[9].items()})

    vphase({RD: [postp_setup]} if c["postp"] else {}, N)
    publish("N")
    postp()
    finish("N")

    restore()
    a("L_roleO:")
    VO = V_R; VP = V_R + 1; VML = V_R + 2; VY = V_R + 3; VZ = V_R + 4; VOUT = V_R + 5; VYS = V_R + 6; VZ4 = V_R + 7
    VCW = V_R + 8; VCR = V_R + 9; VYW = V_R + 10; VYR = V_R + 11
    S_VAL = S_MA
    a(f"v_and_b32 v{V_T0}, 0x1f8, v0")
    a(f"v_lshlrev_b32 v{VCR}, 2, v{V_T0}")
    a(f"s_lshl_b32 s{S_T0}, s{S_XG}, 9")
    a(f"v_add_u32 v{V_T0}, s{S_T0}, v{V_T0}")
    a(f"v_mul_u32_u24 v{V_T0}, 1152, v{V_T0}")
    a(f"v_and_b32 v{V_T1}, 7, v{V_L}")
    a(f"v_lshl_add_u32 v{VO}, v{V_T1}, 4, v{V_T0}")
    a(f"s_lshl_b32 s{S_OQ}, s{S_J}, 7")
    def ldO(t):
        b = alloc(("O", t))
        a(f"buffer_load_dwordx4 {r4(b)}, v{VO}, {srd(sWO)}, s{S_OQ} offen {polW}", tag=("O", t))
        a(f"s_addk_i32 s{S_OQ}, 1152")
    issuers["O"] = ldO
    for t in range(c["nOpre"]):
        seq.append(("O", t))
    def o_setup():
        a(f"s_lshr_b32 s{S_T0}, s{S_W}, 1")
        a(f"s_lshl2_add_u32 s{S_T0}, s{S_XG}, s{S_T0}")
        a(f"s_lshl_b32 s{S_T1}, s{S_T0}, 12")
        a(f"v_and_b32 v{V_T0}, 127, v0")
        a(f"v_lshl_add_u32 v{VP}, v{V_T0}, 2, s{S_T1}")
        a(f"s_lshl_b32 s{S_T1}, s{S_T0}, 7")
        a(f"s_add_u32 s{S_T1}, s{S_T1}, {WS_ML}")
        a(f"v_and_b32 v{V_T0}, 7, v{V_L}")
        a(f"v_lshl_add_u32 v{VML}, v{V_T0}, 4, s{S_T1}")
        a(f"v_bfe_u32 v{V_T1}, v{V_L}, 3, 1")
        a(f"v_lshl_add_u32 v{VML}, v{V_T1}, 2, v{VML}")
        a(f"v_lshlrev_b32 v{VCW}, 2, v0")
        a(f"v_lshrrev_b32 v{V_T1}, 3, v{V_I}")
        a(f"v_lshrrev_b32 v{V_T2}, 1, v{V_G}")
        a(f"v_cmp_eq_u32 s[{S_VAL}:{S_VAL+1}], v{V_T1}, v{V_T2}")
        a(f"v_lshrrev_b32 v{V_T1}, 3, v{V_L}")
        a(f"v_lshlrev_b32 v{V_T1}, 8, v{V_T1}")
        a(f"v_lshl_add_u32 v{V_T1}, v{V_T0}, 4, v{V_T1}")
        a(f"s_and_b32 s{S_T0}, s{S_W}, 1")
        a(f"s_lshl_b32 s{S_T0}, s{S_T0}, 7")
        a(f"v_add_u32 v{VYR}, s{S_T0}, v{V_T1}")
        a(f"s_add_u32 s{S_T0}, s{S_T0}, s{S_M}")
        a(f"v_add_u32 v{V_T1}, s{S_T0}, v{V_X}")
        a(f"v_and_b32 v{V_T2}, 0x1a0, v0")
        a(f"v_cmp_eq_u32 vcc, 0, v{V_T2}")
        a(f"v_cndmask_b32 v{VYS}, v{V_OOB}, v{V_T1}, vcc")
        a(f"v_and_b32 v{V_T0}, 1, v{V_L}")
        a(f"v_bfe_u32 v{V_T1}, v{V_L}, 3, 1")
        a(f"v_bfe_u32 v{V_T2}, v{V_L}, 2, 1")
        a(f"v_lshl_add_u32 v{V_T1}, v{V_T1}, 1, v{V_T2}")
        a(f"v_lshl_add_u32 v{V_T0}, v{V_T0}, 2, v{V_T1}")
        a(f"s_lshl_b32 s{S_T0}, s{S_IDX}, 3")
        a(f"v_add_u32 v{V_T0}, s{S_T0}, v{V_T0}")
        a(f"v_lshlrev_b32 v{VOUT}, 1, v{V_T0}")
        a(f"buffer_load_ushort v{V_X}, v{VOUT}, {srd(sX)}, 0 offen", tag="xr")
        a(f"v_bfe_u32 v{V_T1}, v{V_L}, 1, 1")
        a(f"v_lshl_add_u32 v{V_T1}, v{V_G}, 1, v{V_T1}")
        a(f"v_mul_u32_u24 v{V_T1}, 2304, v{V_T1}")
        a(f"v_lshl_add_u32 v{V_T1}, v{V_T0}, 2, v{V_T1}")
        a(f"v_add_u32 v{VY}, {WS_Y}, v{V_T1}")
        if c["zt"]:
            a(f"v_lshlrev_b32 v{V_T0}, 4, v{V_L}")
            a(f"s_mul_i32 s{S_T0}, s{S_IDX}, 4608")
        else:
            a(f"v_lshrrev_b32 v{V_T0}, 1, v{V_L}")
            a(f"v_mul_u32_u24 v{V_T0}, 2304, v{V_T0}")
            a(f"v_and_b32 v{V_T1}, 1, v{V_L}")
            a(f"v_lshl_add_u32 v{V_T0}, v{V_T1}, 4, v{V_T0}")
            a(f"s_lshl_b32 s{S_T0}, s{S_IDX}, 5")
        a(f"s_add_u32 s{S_T0}, s{S_T0}, {WS_Z}")
        a(f"v_add_u32 v{VZ}, s{S_T0}, v{V_T0}")
        a(f"v_cmp_gt_u32 vcc, 32, v{V_L}")
        a(f"v_and_b32 v{V_T0}, 0x32, v{V_L}")
        a(f"v_cndmask_b32 v{VZ4}, v{V_OOB}, v{VZ}, vcc")
        a(f"v_cmp_eq_u32 vcc, 0, v{V_T0}")
        zs = 1024 if c["zt"] else 32 * 2304
        a(f"s_mov_b32 s4, {zs}"); a(f"s_mov_b32 s5, {2*zs}"); a(f"s_mov_b32 s6, {3*zs}"); a(f"s_mov_b32 s7, {4*zs}")
        a(f"v_cndmask_b32 v{VOUT}, v{V_OOB}, v{VOUT}, vcc")
    vphase({RD: [o_setup]}, N)
    publish("O")
    flush_seq()
    for t in range(c["nOpre"], 8): ldO(t)
    P = [alloc(("p", u)) for u in range(3)]
    regs = [P[0] + k for k in range(4)] + [P[1] + k for k in range(4)]
    sets = []
    for q_ in range(c["k1"]):
        b0, b1 = alloc(("ps", q_, 0)), alloc(("ps", q_, 1))
        sets.append([b0 + k for k in range(4)] + [b1 + k for k in range(4)])
    mk1 = lambda rs: [f"buffer_load_dword v{rs[s_]}, v{VP}, {srd(sWS)}, 0 offen offset:{512*s_} sc1" for s_ in range(8)]
    Mv, Lv = P[2], P[2] + 1
    mlload = f"buffer_load_dword v{Mv}, v{VML}, {srd(sWS)}, 0 offen sc1"
    a("L_mlp:")
    a(mlload, tag="ml")
    for l in mk1(sets[0]): a(l)
    a.wait("ml")
    chk([Mv])
    a("s_cbranch_vccz L_mlok")
    a("s_waitcnt vmcnt(0)")
    a(f"s_sub_u32 s{S_SPIN}, s{S_SPIN}, 1")
    a("s_cbranch_scc0 L_mlp")
    a("L_mlok:")
    a(f"v_mov_b32_dpp v{Lv}, v{Mv} row_ror:8 {FULL}")
    WT = V_T4
    a(f"v_max_f32_dpp v{WT}, v{Mv}, v{Mv} quad_perm:[1,0,3,2] {FULL}")
    a(f"v_max_f32_dpp v{WT}, v{WT}, v{WT} quad_perm:[2,3,0,1] {FULL}")
    a(f"v_max_f32_dpp v{WT}, v{WT}, v{WT} row_half_mirror {FULL}")
    a(f"s_mov_b32 s{S_T1}, {hex(LOG2E)}")
    a(f"v_sub_f32 v{WT}, v{Mv}, v{WT}")
    a(f"v_mul_f32 v{WT}, s{S_T1}, v{WT}")
    a(f"v_exp_f32 v{WT}, v{WT}")
    for k in range(4):
        a(f"v_mov_b32 v{V_ACC+k}, 0")
    a(f"v_mul_f32 v{V_T1}, v{WT}, v{Lv}")
    a(f"v_add_f32_dpp v{V_T1}, v{V_T1}, v{V_T1} quad_perm:[1,0,3,2] {FULL}")
    a(f"v_add_f32_dpp v{V_T1}, v{V_T1}, v{V_T1} quad_perm:[2,3,0,1] {FULL}")
    a(f"v_add_f32_dpp v{V_T1}, v{V_T1}, v{V_T1} row_half_mirror {FULL}")
    a(f"v_rcp_f32 v{V_T1}, v{V_T1}")
    a(f"v_mul_f32 v{WT}, v{WT}, v{V_T1}")
    def red1(rs):
        a(f"v_mul_f32_dpp v{V_T1}, v{WT}, v{rs[0]} row_newbcast:0 {FULL}")
        for s_ in range(1, 8):
            a(f"v_fmac_f32_dpp v{V_T1}, v{WT}, v{rs[s_]} row_newbcast:{s_} {FULL}")
    if c["sel1"]:
        spoll("O1", mk1(sets[0]), [[r] for r in sets[0]], first_issued=True); red1(sets[0])
    else:
        ppoll("O1", mk1, sets, red1, first_issued=True)
    stamp("got1")
    a(f"v_cvt_pk_bf16_f32 v{V_T1}, v{V_T1}, v{V_T1}")
    a(f"ds_write_b32 v{VCW}, v{V_T1} offset:{L_OC}")
    a(f"ds_read_b128 {r4(P[0])}, v{VCR} offset:{L_OC}")
    a(f"ds_read_b128 {r4(P[1])}, v{VCR} offset:{L_OC+16}")
    a("s_waitcnt lgkmcnt(0)")
    A2 = [V_A, SCR]
    for t in range(8):
        A = A2[t & 1]
        for d in range(4):
            a(f"v_and_b32 v{A+d}, v{regs[t]}, v{V_M+d}")
        if t: a(f"v_mfma_f32_16x16x32_bf16 {r4(V_ACC)}, {r4(A2[(t-1)&1])}, {r4(slot[('O', t-1)])}, {r4(V_ACC)}")
    a(f"v_mfma_f32_16x16x32_bf16 {r4(V_ACC)}, {r4(A2[1])}, {r4(slot[('O', 7)])}, {r4(V_ACC)}")
    a(f"s_mov_b64 exec, s[{S_VAL}:{S_VAL+1}]")
    a(f"ds_write_b128 v{V_W1}, {r4(V_ACC)} offset:{L_YP}")
    a(f"s_mov_b64 exec, -1")
    a(f"s_cmp_gt_u32 s{S_W}, 2")
    a("s_waitcnt lgkmcnt(0)")
    a("s_barrier")
    a("s_cbranch_scc1 L_Oend")
    a(f"s_cmp_eq_u32 s{S_W}, 2")
    a("s_cbranch_scc1 L_R")
    a(f"ds_read_b128 {r4(SCR)}, v{VYR} offset:{L_YP}")
    a(f"ds_read_b128 {r4(SCR+4)}, v{VYR} offset:{L_YP+2048}")
    a("s_waitcnt lgkmcnt(0)")
    for k in range(4):
        a(f"v_add_f32 v{SCR+k}, v{SCR+k}, v{SCR+4+k}")
    tred4(SCR)
    a(f"v_min_u32 v{SCR}, -2, v{SCR}")
    a(f"buffer_store_dword v{SCR}, v{VYS}, {srd(sWS)}, 0 offen sc1", tag="ypub")
    stamp("ypub")
    sv = list(stn)
    a("s_branch L_Oend")
    a("L_R:")
    T = [alloc(("t", u)) for u in range(2)]
    poll("O2", [f"buffer_load_dword v{P[2]}, v{VY}, {srd(sWS)}, 0 offen sc1"], [P[2]])
    def red_b1b4b5(r):
        a(f"v_add_f32_dpp v{r}, v{r}, v{r} quad_perm:[2,3,0,1] {FULL}")
        a(f"v_mov_b32 v{V_T1}, v{r}")
        a(f"v_permlane16_swap_b32 v{r}, v{V_T1}")
        a(f"v_add_f32 v{r}, v{r}, v{V_T1}")
        a(f"v_mov_b32 v{V_T1}, v{r}")
        a(f"v_permlane32_swap_b32 v{r}, v{V_T1}")
        a(f"v_add_f32 v{r}, v{r}, v{V_T1}")
    H = P[2]
    red_b1b4b5(H)
    bf16r(H, H)
    a(f"v_lshlrev_b32 v{V_X}, 16, v{V_X}")
    a(f"v_add_f32 v{H}, v{H}, v{V_X}")
    bf16r(H, H)
    so = ["0", "s4", "s5", "s6", "s7"]
    sets = []
    for q_ in range(c["k3"]):
        bs = [alloc(("zs", q_, u)) for u in range(5)]
        sets.append([b_ + k for b_ in bs for k in range(4)])
    mk3 = lambda rs: [f"buffer_load_dwordx4 {r4(rs[4*t])}, v{VZ if t < 4 else VZ4}, {srd(sWS)}, {so[t]} offen sc1" for t in range(5)]
    def red3(rs):
        for k in range(4):
            a(f"v_add_f32 v{T[0]+k}, v{rs[k]}, v{rs[4+k]}")
            a(f"v_add_f32 v{T[1]+k}, v{rs[8+k]}, v{rs[12+k]}")
        for k in range(4):
            a(f"v_add_f32 v{T[0]+k}, v{T[0]+k}, v{rs[16+k]}")
        for k in range(4):
            a(f"v_add_f32 v{T[0]+k}, v{T[0]+k}, v{T[1]+k}")
    if c["gate3"]:
        gate("3", f"buffer_load_dword v{T[1]}, v{VZ}, {srd(sWS)}, 0 offen sc1", T[1], c["gate3"], c["gsl3"])
    ppoll("O3", mk3, sets, red3)
    stamp("got3")
    Z = T[0]
    for i in range(2):
        a(f"v_add_f32_dpp v{Z+i}, v{Z+i}, v{Z+i} row_ror:8 row_mask:0xf bank_mask:0x3")
    for i in range(2):
        a(f"v_add_f32_dpp v{Z+i}, v{Z+i+2}, v{Z+i+2} row_ror:8 row_mask:0xf bank_mask:0xc")
    a(f"v_add_f32_dpp v{Z}, v{Z}, v{Z} row_shl:4 row_mask:0xf bank_mask:0x5")
    a(f"v_add_f32_dpp v{Z}, v{Z+1}, v{Z+1} row_shr:4 row_mask:0xf bank_mask:0xa")
    red_b1b4b5(Z)
    bf16r(Z, Z)
    a(f"v_add_f32 v{Z}, v{Z}, v{H}")
    a(f"v_cvt_pk_bf16_f32 v{Z}, v{Z}, v{Z}")
    a(f"buffer_store_short v{Z}, v{VOUT}, {srd(sOUT)}, 0 offen {c['polout']}")
    stamp("end")
    a("L_Oend:")
    finish("O")

    restore()
    a("L_roleF:")
    VF1 = V_R; VF2 = V_R + 1; VY = V_R + 2; VZS = V_R + 3; VH0 = V_R + 4; VH1 = V_R + 5; VCS = V_R + 6; VSTW = V_R + 7
    VCR = V_R + 8; VGW = V_R + 9; VGR = V_R + 10; VX0 = V_R + 11; VX1 = V_R + 12; VYB = V_R + 13; VW2R = V_X
    VG64 = V_XS; VHW = V_XS + 2; VHR = V_XS + 3; VGS = V_XS + 4; VZS2 = V_XS + 5; VSTR = V_XS + 6
    S_VAL = S_MA; S_L8 = S_MC; S_E1 = 4
    lg = (lambda n: f"s_waitcnt lgkmcnt({n})") if (not c["stamps"] or c["lgok"]) else (lambda n: "s_waitcnt lgkmcnt(0)")
    a(f"v_lshrrev_b32 v{V_T0}, 3, v0")
    a(f"v_mul_u32_u24 v{VCR}, 48, v{V_T0}")
    a(f"v_mul_u32_u24 v{V_T0}, {9*9216}, v{V_T0}")
    a(f"v_and_b32 v{V_T1}, 3, v{V_L}")
    a(f"v_lshl_add_u32 v{VF1}, v{V_T1}, 4, v{V_T0}")
    a(f"s_lshl_b32 s{S_OQ}, s{S_IDX}, 6")
    a(f"s_mov_b32 s{S_E1}, 0xf0f0f0f0"); a(f"s_mov_b32 s{S_E1+1}, 0xf0f0f0f0")
    a(f"v_add_u32 v{VF1}, s{S_OQ}, v{VF1}")
    a(f"v_mov_b32 v{V_T0}, s{sW1}"); a(f"v_mov_b32 v{V_T1}, s{sW3}")
    a(f"v_mov_b32 v{V_T2}, s{sW1+1}"); a(f"v_mov_b32 v{V_T3}, s{sW3+1}")
    a(f"v_cndmask_b32 v{V_T0}, v{V_T0}, v{V_T1}, s[{S_E1}:{S_E1+1}]")
    a(f"v_cndmask_b32 v{V_T2}, v{V_T2}, v{V_T3}, s[{S_E1}:{S_E1+1}]")
    a(f"v_add_co_u32 v{VG64}, vcc, v{V_T0}, v{VF1}")
    a(f"v_addc_co_u32 v{VG64+1}, vcc, 0, v{V_T2}, vcc")
    def ldF(t):
        b = alloc(("F", t))
        if c["foob"]:
            a(f"buffer_load_dwordx4 {r4(b)}, v{VF1}, {srd(sW1)}, 0 offen {polF}", tag=("F", t))
        else:
            a(f"global_load_dwordx4 {r4(b)}, {r2(VG64)}, off {polF}", tag=("F", t))
        if t < 8:
            a(f"v_add_co_u32 v{VG64}, vcc, 9216, v{VG64}")
            a(f"v_addc_co_u32 v{VG64+1}, vcc, 0, v{VG64+1}, vcc")
    VD = [alloc("vd0"), alloc("vd1")]
    vd = [VD[0] + k for k in range(4)] + [VD[1]]
    def ldD(t):
        a(f"s_mov_b32 m0, s{S_T2}")
        a(f"s_addk_i32 s{S_T2}, 0x2000")
        a(f"buffer_load_dwordx4 v{vd[t]}, {srd(sW2)}, s{S_OK} offen {c['pol2']} lds", tag=("D", t))
    issuers["F"] = ldF; issuers["D"] = ldD
    late = [("D", t) for t in range(5)] + [("F", t) for t in range(9)]
    if not c["w2first"]: late = late[5:] + late[:5]
    npre = c["nFpre"]
    for t in late[:npre]: seq.append(t)
    def f_setup():
        a(f"v_lshrrev_b32 v{V_T1}, 3, v{V_I}")
        a(f"v_lshrrev_b32 v{V_T2}, 1, v{V_G}")
        a(f"v_cmp_eq_u32 s[{S_VAL}:{S_VAL+1}], v{V_T1}, v{V_T2}")
        a(f"v_bfe_u32 v{V_T2}, v{V_L}, 2, 1")
        a(f"v_lshl_add_u32 v{V_T2}, v{V_T2}, 4, v{V_T1}")
        a(f"v_mul_u32_u24 v{V_T2}, 144, v{V_T2}")
        a(f"v_and_b32 v{V_T3}, 0x70, v{V_W1}")
        a(f"s_mul_i32 s{S_T0}, s{S_W}, 288")
        a(f"v_add3_u32 v{VGW}, v{V_T2}, v{V_T3}, s{S_T0}")
        a(f"v_and_b32 v{V_T2}, 7, v{V_L}")
        a(f"v_lshrrev_b32 v{V_T1}, 5, v{V_L}")
        a(f"v_lshl_add_u32 v{V_T1}, v{V_T1}, 4, v{V_T2}")
        a(f"v_mul_u32_u24 v{V_T1}, 144, v{V_T1}")
        a(f"v_bfe_u32 v{V_T3}, v{V_L}, 3, 2")
        a(f"v_add_u32 v{V_T3}, v{V_W2}, v{V_T3}")
        a(f"v_lshl_add_u32 v{VGR}, v{V_T3}, 2, v{V_T1}")
        a(f"s_and_b32 s{S_T0}, s{S_W}, 4")
        a(f"s_lshl_b32 s{S_T0}, s{S_T0}, 2")
        a(f"s_and_b32 s{S_T1}, s{S_W}, 1")
        a(f"s_lshl3_add_u32 s{S_T0}, s{S_T1}, s{S_T0}")
        a(f"s_and_b32 s{S_T1}, s{S_W}, 2")
        a(f"s_lshl1_add_u32 s{S_T0}, s{S_T1}, s{S_T0}")
        a(f"v_bfe_u32 v{VHW}, v{V_L}, 3, 2")
        a(f"v_add_lshl_u32 v{VHW}, v{VHW}, s{S_T0}, 1")
        a(f"v_lshlrev_b32 v{VHR}, 4, v{V_G}")
        a(f"v_lshlrev_b32 v{VSTR}, 3, v{V_T2}")
        a(f"s_mul_i32 s{S_OK}, s{S_IDX}, {32*1152}")
        a(f"s_mul_i32 s{S_T1}, s{S_W}, 144")
        for t in range(5):
            a(f"v_add_u32 v{V_T1}, {512*t}, v0")
            a(f"v_mul_u32_u24 v{V_T3}, 3543, v{V_T1}")
            a(f"v_lshrrev_b32 v{V_T3}, 18, v{V_T3}")
            a(f"v_mul_u32_u24 v{V_T4}, 74, v{V_T3}")
            a(f"v_sub_u32 v{V_T4}, v{V_T1}, v{V_T4}")
            a(f"v_cmp_gt_u32 vcc, 72, v{V_T4}")
            a(f"v_lshlrev_b32 v{V_T3}, 1, v{V_T3}")
            a(f"v_sub_u32 v{V_T3}, v{V_T1}, v{V_T3}")
            a(f"v_lshlrev_b32 v{V_T3}, 4, v{V_T3}")
            a(f"v_cndmask_b32 v{vd[t]}, v{V_OOB}, v{V_T3}, vcc")
        a(f"v_cmp_gt_u32 vcc, {32*74-2048}, v0")
        a(f"v_lshrrev_b32 v{V_T1}, 2, v{V_I}")
        a(f"v_and_b32 v{V_T3}, 1, v{V_G}")
        a(f"v_cndmask_b32 v{vd[4]}, v{V_OOB}, v{vd[4]}, vcc")
        a(f"v_lshl_add_u32 v{V_T1}, v{V_T3}, 2, v{V_T1}")
        a(f"v_lshrrev_b32 v{V_T3}, 1, v{V_G}")
        a(f"v_lshl_add_u32 v{V_T1}, v{V_T3}, 4, v{V_T1}")
        a(f"v_mul_u32_u24 v{V_T1}, 1184, v{V_T1}")
        a(f"v_and_b32 v{V_T3}, 3, v{V_L}")
        a(f"v_lshl_add_u32 v{V_T1}, v{V_T3}, 3, v{V_T1}")
        a(f"v_add_u32 v{VW2R}, s{S_T1}, v{V_T1}")
        a(f"s_lshl_b32 s{S_T2}, s{S_T1}, 1")
        a(f"s_mul_i32 s{S_T0}, s{S_W}, {9*4608}")
        a(f"s_add_u32 s{S_T0}, s{S_T0}, {WS_Z}")
        a(f"s_lshl_b32 s19, s{S_IDX}, 5")
        a(f"s_add_u32 s{S_T0}, s{S_T0}, s19")
        a(f"v_lshrrev_b32 v{V_T1}, 3, v{V_L}")
        a(f"v_mul_u32_u24 v{V_T3}, 4608, v{V_T1}")
        a(f"v_lshl_add_u32 v{V_T3}, v{V_T2}, 2, v{V_T3}")
        a(f"v_add_u32 v{VZS}, s{S_T0}, v{V_T3}")
        a(f"v_cmp_gt_u32 s[{S_L8}:{S_L8+1}], 8, v{V_L}")
        a(f"v_add_u32 v{V_T3}, {8*4608}, v{VZS}")
        a(f"v_mul_u32_u24 v{V_T1}, 2304, v{V_T1}")
        a(f"v_cndmask_b32 v{VZS2}, v{V_OOB}, v{V_T3}, s[{S_L8}:{S_L8+1}]")
        a(f"v_lshl_add_u32 v{V_T3}, v{V_L}, 1, s{S_T1}")
        a(f"buffer_load_ushort v{VX0}, v{V_T3}, {srd(sX)}, 0 offen", tag="xf")
        a(f"v_lshl_add_u32 v{V_T3}, v{V_T2}, 1, s{S_T1}")
        a(f"buffer_load_ushort v{VX1}, v{V_T3}, {srd(sX)}, 0 offen offset:128", tag="xf")
        a(f"s_add_u32 s{S_T2}, s{S_T2}, {WS_Y}")
        a(f"v_lshl_add_u32 v{VY}, v{V_L}, 2, s{S_T2}")
        a(f"v_lshl_add_u32 v{V_T1}, v{V_T2}, 2, v{V_T1}")
        a(f"v_add_u32 v{VYB}, s{S_T2}, v{V_T1}")
        a(f"s_sub_u32 s{S_T0}, s{S_J}, 9")
        a(f"s_lshl_b32 s{S_T0}, s{S_T0}, 7")
        a(f"s_add_u32 s{S_T0}, s{S_T0}, {WS_Y}")
        a(f"v_cmp_gt_u32 vcc, 64, v0")
        a(f"v_add_u32 v{V_T1}, s{S_T0}, v{V_T1}")
        a(f"s_mul_i32 s{S_T0}, s{S_W}, 384")
        a(f"v_cndmask_b32 v{VGS}, v{V_OOB}, v{V_T1}, vcc")
        a(f"s_add_u32 s{S_T0}, s{S_T0}, {L_HC}")
        a(f"v_mov_b32 v{V_T3}, {L_DUM}")
        a(f"v_mul_u32_u24 v{V_T1}, 57, v{V_L}")
        a(f"v_lshrrev_b32 v{V_T1}, 9, v{V_T1}")
        a(f"v_mad_u32_u24 v{V_T1}, v{V_T1}, 3, v{V_L}")
        a(f"v_lshl_add_u32 v{VH0}, v{V_T1}, 2, s{S_T0}")
        a(f"s_add_u32 s{S_T0}, s{S_T0}, {(64+21)*4}")
        a(f"v_lshl_add_u32 v{VH1}, v{V_T2}, 2, s{S_T0}")
        a(f"v_cmp_eq_u32 vcc, 63, v{V_L}")
        a(f"v_lshlrev_b32 v{V_T1}, 1, v{V_W2}")
        a(f"v_add_u32 v{V_T1}, {L_ST}, v{V_T1}")
        a(f"v_cndmask_b32 v{VSTW}, v{V_T3}, v{V_T1}, vcc")
        a(f"s_lshl_b32 s{S_T2}, s{S_W}, 10")
        a(f"s_add_u32 s{S_T2}, s{S_T2}, {L_W2}")
        a(f"s_mov_b32 s16, {2*2304}"); a(f"s_mov_b32 s17, {4*2304}"); a(f"s_mov_b32 s18, {6*2304}")
    def red8(regs):
        for m in ("quad_perm:[1,0,3,2]", "quad_perm:[2,3,0,1]", "row_half_mirror"):
            for r in regs:
                a(f"v_add_f32_dpp v{r}, v{r}, v{r} {m} {FULL}")
    vphase({RD: [f_setup] + ([postp_setup] if c["postp"] else [])}, N)
    publish("F")
    flush_seq()
    postp()
    U = [alloc(("u", u)) for u in range(3)]
    gl = f"buffer_load_dword v{U[2]+1}, v{VGS}, {srd(sWS)}, 0 offen sc1"
    for n_, t in enumerate(late):
        if n_ < npre: continue
        if c["fbar"] and n_ == (5 if c["w2first"] else 9): a("s_barrier")
        if c["trlate"] and not c["w2first"] and n_ == 9: a(gl, tag="g2")
        issuers[t[0]](t[1])
    W2 = [alloc(("w2", u)) for u in range(5)]
    DD = [alloc(("dd", u)) for u in range(5)]
    bs = [alloc(("ys", u)) for u in range(3)]
    yr = [bs[u >> 2] + (u & 3) for u in range(9)]
    so = ["0", "s16", "s17", "s18"]
    yl = [f"buffer_load_dword v{yr[8]}, v{VYB}, {srd(sWS)}, 0 offen offset:256 sc1"] + \
        [f"buffer_load_dword v{yr[u]}, v{VY}, {srd(sWS)}, {so[u>>1]} offen offset:{2304*(u&1)} sc1" for u in range(8)]
    if not (c["trlate"] and not c["w2first"]): a(gl, tag="g2")
    assert not a.pending("xf")
    for d in range(4):
        a(f"v_and_b32 v{SCR+d}, 0x3f803f80, v{V_M+d}")
    a(f"v_lshlrev_b32 v{VX0}, 16, v{VX0}")
    a(f"v_lshlrev_b32 v{VX1}, 16, v{VX1}")
    a(f"s_mov_b32 s{S_T1}, 0xbfb8aa3b")
    a(f"v_mov_b32 v{V_T5}, 0")
    for t in range(9):
        a.wait(("F", t))
        if t in (2, 8): stamp(f"f{t}")
        a(f"v_mfma_f32_16x16x32_bf16 {r4(SCR+4)}, {r4(SCR)}, {r4(slot[('F', t)])}, {r4(SCR+4) if t else 0}")
    a.wait("g2")
    a(f"v_cmp_eq_u32 vcc, -1, v{U[2]+1}")
    a(f"s_bcnt1_i32_b64 s19, vcc")
    a(f"v_mov_b32 v{V_T0}, s19")
    a(f"ds_write_b32 v{V_W2}, v{V_T0} offset:{L_FLAG}")
    a(f"s_mov_b64 exec, s[{S_VAL}:{S_VAL+1}]")
    a(f"ds_write_b128 v{VGW}, {r4(SCR+4)} offset:{L_CP}")
    a(f"s_mov_b64 exec, -1")
    a("s_waitcnt lgkmcnt(0)")
    a("s_barrier")
    a(f"ds_read_b32 v{V_T0}, v{V_T5} offset:{L_FLAG}")
    a(f"ds_read_b32 v{VCS}, v{VGR} offset:{L_CP}")
    a(f"ds_read_b32 v{V_T1}, v{VGR} offset:{L_CP+1152}")
    a(lg(2))
    a(f"v_readfirstlane_b32 s19, v{V_T0}")
    a(f"s_cmp_le_u32 s19, {c['gate2']-1}")
    a("s_cbranch_scc1 L_go2")
    a(f"s_cmp_lg_u32 s{S_W}, 0")
    a("s_cbranch_scc1 L_g2")
    gate("2", gl, U[2] + 1, c["gate2"] - 1, c["gsl2"])
    a("L_g2:")
    a("s_barrier")
    a("L_go2:")
    for l in yl: a(l)
    def tr_reads():
        for t in range(5):
            for h in range(2):
                a(f"ds_read_b64_tr_b16 {r2(W2[t]+2*h)}, v{VW2R} offset:{L_W2+32*t+8*1184*h}")
    if not c["trlate"]: tr_reads()
    a(lg(0 if c["trlate"] else 10))
    a(f"v_add_f32 v{VCS}, v{VCS}, v{V_T1}")
    red8([VCS])
    stamp("w13")
    H0, H1 = V_Q, V_Q + 1
    spoll("F2", yl, [[yr[8]]] + [[r] for r in yr[:8]], first_issued=True)
    a(f"v_add_f32_dpp v{H1}, v{yr[8]}, v{yr[8]} row_ror:8 {FULL}")
    a(f"v_add_f32 v{H0}, v{yr[0]}, v{yr[1]}")
    a(f"v_add_f32 v{H0+2}, v{yr[2]}, v{yr[3]}")
    a(f"v_mov_b32 v{V_T0}, v{H1}")
    a(f"v_add_f32 v{H0+3}, v{yr[4]}, v{yr[5]}")
    a(f"v_add_f32 v{V_T1}, v{yr[6]}, v{yr[7]}")
    stamp("got2")
    a(f"v_permlane16_swap_b32 v{H1}, v{V_T0}")
    a(f"v_add_f32 v{H0}, v{H0}, v{H0+2}")
    a(f"v_add_f32 v{H1}, v{H1}, v{V_T0}")
    a(f"v_add_f32 v{H0+3}, v{H0+3}, v{V_T1}")
    a(f"v_mov_b32 v{V_T0}, v{H1}")
    a(f"v_add_f32 v{H0}, v{H0}, v{H0+3}")
    a(f"v_cvt_pk_bf16_f32 v{H0}, v{H0}, v{H0}")
    a(f"v_permlane32_swap_b32 v{H1}, v{V_T0}")
    a(f"v_and_b32 v{H0}, 0xffff0000, v{H0}")
    a(f"v_add_f32 v{H1}, v{H1}, v{V_T0}")
    a(f"v_add_f32 v{H0}, v{H0}, v{VX0}")
    a(f"v_cvt_pk_bf16_f32 v{H1}, v{H1}, v{H1}")
    a(f"v_cvt_pk_bf16_f32 v{H0}, v{H0}, v{H0}")
    a(f"v_and_b32 v{H1}, 0xffff0000, v{H1}")
    a(f"ds_write_b32 v{VH0}, v{H0}")
    a(f"v_add_f32 v{H1}, v{H1}, v{VX1}")
    a(f"v_cvt_pk_bf16_f32 v{H1}, v{H1}, v{H1}")
    a(f"ds_write_b32 v{VH1}, v{H1}")
    a(f"ds_read_b128 {r4(U[0])}, v{VCR} offset:{L_HC}")
    a(f"ds_read_b128 {r4(U[1])}, v{VCR} offset:{L_HC+16}")
    a(f"ds_read_b32 v{U[2]}, v{VCR} offset:{L_HC+32}")
    S1, S2 = V_T2, V_T3
    a(f"v_and_b32 v{H0}, 0xffff0000, v{H0}")
    a(f"v_and_b32 v{H1}, 0xffff0000, v{H1}")
    a(f"v_cndmask_b32 v{H1}, 0, v{H1}, s[{S_L8}:{S_L8+1}]")
    a(f"v_add_f32 v{S1}, v{H0}, v{H1}")
    a(f"v_mul_f32 v{S2}, v{H0}, v{H0}")
    a(f"v_fmac_f32 v{S2}, v{H1}, v{H1}")
    rs = wred_steps("v_add_f32", [S1, S2])
    for t_ in rs.pop(0): a(t_)
    a("s_waitcnt lgkmcnt(0)")
    cf = [U[0] + k for k in range(4)] + [U[1] + k for k in range(4)] + [U[2]]
    for t in range(9):
        A = A2[t & 1]
        for d in range(4):
            a(f"v_and_b32 v{A+d}, v{cf[t]}, v{V_M+d}")
        if t: a(f"v_mfma_f32_16x16x32_bf16 {r4(V_ACC)}, {r4(A2[(t-1)&1])}, {r4(slot[('F', t-1)])}, {r4(V_ACC) if t > 1 else 0}")
        if rs:
            for t_ in rs.pop(0): a(t_)
        elif t == 5: a(f"ds_write_b64 v{VSTW}, {r2(S1)}")
        elif t == 7:
            a("s_waitcnt lgkmcnt(0)")
            a("s_barrier")
            a(f"ds_read_b64 {r2(S1)}, v{VSTR} offset:{L_ST}")
            if c["trlate"] == 1: tr_reads()
    a(f"v_mfma_f32_16x16x32_bf16 {r4(V_ACC)}, {r4(A2[0])}, {r4(slot[('F', 8)])}, {r4(V_ACC)}")
    a(lg(10) if c["trlate"] == 1 else "s_waitcnt lgkmcnt(0)")
    red8([S1, S2])
    a(f"s_mov_b64 exec, s[{S_VAL}:{S_VAL+1}]")
    a(f"ds_write_b128 v{VGW}, {r4(V_ACC)} offset:{L_GP}")
    a(f"s_mov_b64 exec, -1")
    a(f"v_mul_f32 v{S1}, 0x3ae38e39, v{S1}")
    a(f"v_mul_f32 v{S2}, 0x3ae38e39, v{S2}")
    ln_finish(S1, S2)
    a("s_waitcnt lgkmcnt(0)")
    a("s_barrier")
    stamp("gu")
    G = V_T4
    a(f"ds_read_b32 v{G}, v{VGR} offset:{L_GP}")
    a(f"ds_read_b32 v{V_T1}, v{VGR} offset:{L_GP+1152}")
    if c["trlate"] == 2: tr_reads()
    a(f"v_mul_f32 v{VCS}, v{VCS}, v{S1}")
    a(lg(10) if c["trlate"] == 2 else "s_waitcnt lgkmcnt(0)")
    a(f"v_add_f32 v{G}, v{G}, v{V_T1}")
    red8([G])
    a(f"v_sub_f32 v{G}, v{G}, v{VCS}")
    a(f"v_mul_f32 v{G}, v{G}, v{S2}")
    bf16r(G, G)
    a(f"v_mov_b32 v{V_T1}, v{G}")
    a(f"v_mul_f32 v{V_T0}, s{S_T1}, v{G}")
    a(f"v_exp_f32 v{V_T0}, v{V_T0}")
    a(f"v_permlane32_swap_b32 v{G}, v{V_T1}")
    a(f"v_add_f32 v{V_T0}, 1.0, v{V_T0}")
    a(f"v_rcp_f32 v{V_T0}, v{V_T0}")
    a(f"s_mov_b32 exec_hi, 0")
    a(f"v_mul_f32 v{V_T0}, v{G}, v{V_T0}")
    bf16r(V_T0, V_T0)
    a(f"v_mul_f32 v{V_T0}, v{V_T0}, v{V_T1}")
    a(f"v_cvt_pk_bf16_f32 v{V_T0}, v{V_T0}, v{V_T0}")
    a(f"ds_write_b16 v{VHW}, v{V_T0} offset:{L_HID}")
    a(f"s_mov_b32 exec_hi, -1")
    a("s_waitcnt lgkmcnt(0)")
    a("s_barrier")
    a(f"ds_read_b128 {r4(V_A)}, v{VHR} offset:{L_HID}")
    a("s_waitcnt lgkmcnt(0)")
    for t in (4, 0, 1, 2, 3):
        a(f"v_mfma_f32_16x16x32_bf16 {r4(DD[t])}, {r4(V_A)}, {r4(W2[t])}, 0")
    a(f"v_min_u32 v{DD[4]}, -2, v{DD[4]}")
    a(f"buffer_store_dword v{DD[4]}, v{VZS2}, {srd(sWS)}, 0 offen sc1")
    for t in range(1, 4):
        a(f"v_mov_b32_dpp v{DD[0]}, v{DD[t]} quad_perm:[0,1,2,3] row_mask:{hex(1<<t)} bank_mask:0xf")
    a(f"v_min_u32 v{DD[0]}, -2, v{DD[0]}")
    a(f"buffer_store_dword v{DD[0]}, v{VZS}, {srd(sWS)}, 0 offen sc1")
    stamp("zpub")
    finish("F")

    a("L_done:")
    a("s_endpgm")
    a("L_end:")
    a.raw('.section .rodata,"a"'); a.raw(".p2align 6"); a.raw(f".amdhsa_kernel {NAME}")
    a.raw("  .amdhsa_next_free_vgpr 256"); a.raw("  .amdhsa_next_free_sgpr 102"); a.raw("  .amdhsa_accum_offset 256")
    a.raw("  .amdhsa_group_segment_fixed_size 0"); a.raw("  .amdhsa_kernarg_size 96"); a.raw("  .amdhsa_user_sgpr_count 2")
    a.raw("  .amdhsa_user_sgpr_kernarg_segment_ptr 1"); a.raw("  .amdhsa_system_sgpr_workgroup_id_x 1")
    a.raw(".end_amdhsa_kernel")
    return a.text()

if __name__ == "__main__":
    import ast
    kw = {}
    out = sys.argv[1]
    for s in sys.argv[2:]:
        k, v = s.split("=", 1)
        try: v = ast.literal_eval(v)
        except Exception: pass
        kw[k] = v
    open(out, "w").write(gen(**kw))
```

```python
import sys, os
sys.path.insert(0, "dev")
from asmdsl import Asm

NAME = "sequential_preLN__mha_block_cached__glu_gated_swiglu__decode_kernel"
_ref = "sequential_preLN__mha_block_cached__glu_gated_swiglu__decode.s.ref"
HEADER = open(_ref).read().split("; Override launch")[0] if os.path.exists(_ref) else ""

WS_O, WS_ML, WS_Y, WS_Z = 0, 0x20000, 0x22000, 0x28000
WS_PR = 0x54000
WS_ST = 0x100000
WS_SIZE = 0x140000
YG = lambda g: (g // 3) * 0x4000 + (g % 3) * 2304
OOB = 0x7ffffff0
L_QP, L_QB, L_MX, L_LW, L_VT, L_OP = 0, 4096, 4352, 4384, 4416, 4608
L_OC, L_YP = 8704, 10752
L_ST, L_DUM, L_FLAG, L_HID, L_HC, L_GP, L_CP = 8704, 8832, 8896, 8960, 9216, 12288, 16896
L_W2 = 21504
LDS_SIZE = L_W2 + 40960
LOG2E = 0x3fb8aa3b
SCALE = 0x3db504f3
FULL = "row_mask:0xf bank_mask:0xf"

DEF = dict(pat="QKK", B=4, DS=4, DSq=5, boost=1, lnstep=4, clrstep=8, mltile=16, RD=22, nOpre=2, cpf=1,
           gate2=9, gsl2=1, gate3=63, gsl3=1, slO2=4, h1w3=1, side=None, remap=1, tabld=11, tabck=18,
           stamps=False, skip=("ln", "w13", "got2", "gu"), spin=2000000)
STAMPS = {}

def gen(**kw):
    c = dict(DEF); c.update(kw)
    a = Asm()
    N = 32
    DS = c["DS"]
    RM = c["remap"]
    DET = RM and c["side"] is None
    real = lambda l: l + (l & ~0x1fff) if RM else l
    yg = YG if RM else (lambda g: (g // 3) * 0x2000 + (g % 3) * 2304)
    sK, sV, sQ, sX, sWS, sW1, sW2, sD, sW3, sWO, sOUT = 28, 32, 36, 40, 44, 48, 52, 56, 8, 12, 24
    def srd(b): return f"s[{b}:{b+3}]"
    S_XG, S_J, S_HEAD, S_SPLIT, S_OK, S_OV, S_OQ, S_IDX, S_T0, S_T1, S_T2, S_SPIN = 60, 61, 62, 63, 64, 65, 66, 67, 68, 69, 70, 71
    S_MA, S_MC, S_E, S_SIDE, S_SLOT, S_W = 72, 74, 76, 78, 79, 3
    S_SM, S_PO = 100, 101
    S_STAMP = 80
    stn = []
    def stamp(name):
        if c["stamps"] and name not in c["skip"]:
            k = len(stn); stn.append(name)
            assert k < 10
            a(f"s_memrealtime s[{S_STAMP+2*k}:{S_STAMP+2*k+1}]")
    near = any(n not in c["skip"] for n in ("w13", "got2", "gu")) and c["stamps"]
    lg = (lambda n: "s_waitcnt lgkmcnt(0)") if near else (lambda n: f"s_waitcnt lgkmcnt({n})")
    V_L, V_G, V_I, V_KO, V_QO, V_T0, V_T1, V_T2, V_T3, V_T4, V_T5 = 1, 2, 3, 4, 5, 6, 7, 8, 9, 10, 11
    V_M = 12; V_Q = 16; V_C = 20; V_OOB = 22; V_SML = 23; V_A = 24; V_ACC = 28; V_S = 32
    V_CNT = 34; V_X = 35; V_SO = 36; V_MM = 37; V_W1 = 38; V_W2 = 39
    V_R = 40
    V_XS = 56
    POOL0 = 64; SCR = 240
    free = list(range(POOL0, SCR, 4))
    slot = {}
    def alloc(tag):
        slot[tag] = free.pop(0); return slot[tag]
    def release(tag):
        free.append(slot.pop(tag))
    def r4(b): return f"v[{b}:{b+3}]"
    def r2(b): return f"v[{b}:{b+1}]"
    def bf16r(dst, src):
        a(f"v_cvt_pk_bf16_f32 v{dst}, v{src}, v{src}")
        a(f"v_and_b32 v{dst}, 0xffff0000, v{dst}")
    def wred_steps(op, regs):
        out = []
        for k in (8, 4, 2, 1):
            out.append([f"{op}_dpp v{r}, v{r}, v{r} row_ror:{k} {FULL}" for r in regs])
        out.append([f"{op}_dpp v{r}, v{r}, v{r} row_bcast:15 row_mask:0xa bank_mask:0xf" for r in regs])
        out.append([f"{op}_dpp v{r}, v{r}, v{r} row_bcast:31 row_mask:0xc bank_mask:0xf" for r in regs])
        return out
    def wred(op, regs, sdsts):
        for g in wred_steps(op, regs):
            for t in g: a(t)
        for r, s in zip(regs, sdsts):
            a(f"v_readlane_b32 s{s}, v{r}, 63")
    def ln_finish(vmean, vvar):
        a(f"v_fma_f32 v{vvar}, -v{vmean}, v{vmean}, v{vvar}")
        a(f"v_max_f32 v{vvar}, 0, v{vvar}")
        a(f"v_cvt_pk_bf16_f32 v{vvar}, v{vvar}, v{vvar}")
        a(f"v_cvt_pk_bf16_f32 v{vmean}, v{vmean}, v{vmean}")
        a(f"v_and_b32 v{vvar}, 0xffff0000, v{vvar}")
        a(f"v_add_f32 v{vvar}, 0x3727c5ac, v{vvar}")
        bf16r(vvar, vvar)
        a(f"v_sqrt_f32 v{vvar}, v{vvar}")
        a(f"v_and_b32 v{vmean}, 0xffff0000, v{vmean}")
        bf16r(vvar, vvar)
        a(f"v_rcp_f32 v{vvar}, v{vvar}")
    def tred4(Z):
        for i in range(2):
            a(f"v_add_f32_dpp v{Z+i}, v{Z+i}, v{Z+i} row_ror:8 row_mask:0xf bank_mask:0x3")
        for i in range(2):
            a(f"v_add_f32_dpp v{Z+i}, v{Z+i+2}, v{Z+i+2} row_ror:8 row_mask:0xf bank_mask:0xc")
        a(f"v_permlane16_swap_b32 v{Z}, v{Z+1}")
        a(f"v_add_f32 v{Z}, v{Z}, v{Z+1}")
        a(f"v_mov_b32 v{Z+1}, v{Z}")
        a(f"v_permlane32_swap_b32 v{Z}, v{Z+1}")
        a(f"v_add_f32 v{Z}, v{Z}, v{Z+1}")
    def vremap(dst, src, tmp, sside):
        if RM:
            a(f"v_and_b32 v{tmp}, 0xffffe000, v{src}")
            a(f"v_add3_u32 v{dst}, v{src}, v{tmp}, s{sside}")
        else:
            a(f"v_mov_b32 v{dst}, v{src}")
    def sremap(s, tmp):
        if RM:
            a(f"s_and_b32 s{tmp}, s{s}, 0xffffe000")
            a(f"s_add_u32 s{s}, s{s}, s{tmp}")
    def ygroup(dst, g):
        a(f"v_mul_u32_u24 v{dst}, 43, v{g}")
        a(f"v_lshrrev_b32 v{dst}, 7, v{dst}")
        a(f"v_mul_u32_u24 v{dst}, {yg(3) - 3*2304}, v{dst}")
        a(f"v_mul_u32_u24 v{g}, 2304, v{g}")
        a(f"v_add_u32 v{dst}, v{dst}, v{g}")

    a.raw(HEADER.rstrip())
    a.raw(f"; @launch grid=(256,1,1) block=(512,1,1) lds={LDS_SIZE}")
    a.raw('.amdgcn_target "amdgcn-amd-amdhsa--gfx950"')
    a.raw(".text"); a.raw(f".globl {NAME}"); a.raw(".p2align 8"); a.raw(f".type {NAME},@function"); a.raw(f"{NAME}:")
    a(f"s_load_dwordx2 s[{sK}:{sK+1}], s[0:1], 8")
    a(f"s_load_dwordx2 s[{sX}:{sX+1}], s[0:1], 0")
    a(f"s_load_dwordx2 s[{sQ}:{sQ+1}], s[0:1], 24")
    a("s_cmp_ge_u32 s2, 256")
    a("s_cbranch_scc1 L_done")
    stamp("start")
    a(f"s_and_b32 s{S_XG}, s2, 7")
    a(f"s_lshr_b32 s{S_J}, s2, 3")
    a(f"s_and_b32 s{S_T0}, s{S_J}, 3")
    a(f"s_lshl2_add_u32 s{S_HEAD}, s{S_XG}, s{S_T0}")
    a(f"s_lshr_b32 s{S_SPLIT}, s2, 5")
    a(f"s_lshl3_add_u32 s{S_SLOT}, s{S_HEAD}, s{S_SPLIT}")
    a(f"s_lshl_b32 s{S_OK}, s{S_SLOT}, 18")
    a(f"v_lshlrev_b32 v{V_KO}, 4, v0")
    a(f"s_mov_b32 s{sK+2}, 0x4000000")
    a(f"s_mov_b32 s{sK+3}, 0x20000")
    a(f"s_mov_b32 s{S_OV}, s{S_OK}")
    a("s_waitcnt lgkmcnt(0)")

    def ldK(i):
        b = alloc(("K", i))
        a(f"buffer_load_dwordx4 {r4(b)}, v{V_KO}, {srd(sK)}, s{S_OK} offen nt", tag=("K", i))
        if i < N - 1: a(f"s_addk_i32 s{S_OK}, 0x2000")
    def ldV(i):
        b = alloc(("V", i))
        a(f"buffer_load_dwordx4 {r4(b)}, v{V_KO}, {srd(sV)}, s{S_OV} offen nt", tag=("V", i))
        if i < N - 1: a(f"s_addk_i32 s{S_OV}, 0x2000")
    def ldQ(i):
        b = alloc(("Q", i))
        a(f"buffer_load_dwordx4 {r4(b)}, v{V_QO}, {srd(sQ)}, s{S_OQ} offen", tag=("Q", i))
        if i < 17:
            a(f"s_add_u32 s{S_OQ}, s{S_OQ}, 0x40000")
            a(f"s_cmp_eq_u32 s{S_OQ}, 0x480000")
            a(f"s_cselect_b32 s{S_OQ}, 0, s{S_OQ}")
    seq = [("K", i) for i in range(DS)]
    ki = DS; qi = 0; pat = c["pat"]; p = 0
    while qi < 18:
        ch = pat[p % len(pat)]; p += 1
        if ch == "Q": seq.append(("Q", qi)); qi += 1
        elif ki < N: seq.append(("K", ki)); ki += 1
    while ki < N:
        seq.append(("K", ki)); ki += 1
    for i in range(N): seq.append(("V", i))
    issuers = {"K": ldK, "V": ldV, "Q": ldQ}
    nxt = [0]; landed = []; wtd = [0]; cur = [DS]
    def step(depth=None):
        d = cur[0] if depth is None else depth
        k = nxt[0]
        upto = min(k - d, len(seq) - 1)
        if upto >= wtd[0]:
            a.wait(seq[upto])
            while wtd[0] <= upto:
                landed.append(seq[wtd[0]]); wtd[0] += 1
        if k < len(seq):
            t = seq[k]; issuers[t[0]](t[1])
        nxt[0] += 1
    def boost():
        for u in range(c["boost"]): step(cur[0] + 1 + u)
    def flush_seq():
        while nxt[0] < len(seq):
            t = seq[nxt[0]]; issuers[t[0]](t[1]); nxt[0] += 1
    for _ in range(DS): step()
    a(f"s_load_dwordx2 s[{sV}:{sV+1}], s[0:1], 16")
    a(f"s_load_dwordx2 s[{sWS}:{sWS+1}], s[0:1], 88")
    a(f"s_load_dwordx2 s[{sD}:{sD+1}], s[0:1], 80")
    a(f"s_load_dwordx2 s[{sWO}:{sWO+1}], s[0:1], 32")
    a("s_load_dwordx8 s[16:23], s[0:1], 48")
    a(f"v_and_b32 v{V_L}, 63, v0")
    a(f"s_mov_b32 s{sX+2}, 1152"); a(f"s_mov_b32 s{sX+3}, 0x20000")
    a(f"v_lshlrev_b32 v{V_T5}, 3, v{V_L}")
    a(f"v_and_b32 v{V_I}, 15, v0")
    a(f"v_lshrrev_b32 v{V_T1}, 4, v0")
    for t in range(3):
        a(f"buffer_load_dwordx2 {r2(V_XS+2*t)}, v{V_T5}, {srd(sX)}, 0 offen offset:{512*t}", tag="xs")
    a(f"s_mul_i32 s{S_T1}, s{S_SPLIT}, 9")
    a(f"s_lshr_b32 s{S_T1}, s{S_T1}, 2")
    a(f"v_add_u32 v{V_T2}, s{S_T1}, v{V_I}")
    for k in range(2):
        if k: a(f"v_add_u32 v{V_T2}, 16, v{V_T2}")
        a(f"v_subrev_u32 v{V_T3}, 18, v{V_T2}")
        a(f"v_min_u32 v{V_T3}, v{V_T2}, v{V_T3}")
        a(f"v_lshl_add_u32 v{V_T3}, v{V_T3}, 5, v{V_T1}")
        a(f"v_lshlrev_b32 v{V_T3}, 1, v{V_T3}")
        a(f"buffer_load_ushort v{V_XS+6+k}, v{V_T3}, {srd(sX)}, 0 offen", tag="xc")
    a(f"v_lshlrev_b32 v{V_QO}, 13, v{V_T1}")
    a(f"s_lshl_b32 s{S_OQ}, s{S_T1}, 18")
    a(f"s_lshl_b32 s{S_T0}, s{S_HEAD}, 8")
    a(f"v_lshl_add_u32 v{V_QO}, v{V_I}, 4, v{V_QO}")
    a(f"v_add_u32 v{V_QO}, s{S_T0}, v{V_QO}")
    a(f"s_mov_b32 s{sQ+2}, {576*8192}"); a(f"s_mov_b32 s{sQ+3}, 0x20000")
    a(f"v_mov_b32 v{V_OOB}, {hex(OOB)}")
    a(f"v_lshrrev_b32 v{V_T0}, 6, v0")
    a(f"v_lshrrev_b32 v{V_G}, 4, v{V_L}")
    a(f"v_readfirstlane_b32 s{S_W}, v{V_T0}")
    if c["cpf"]:
        a("s_getpc_b64 s[4:5]")
        a("L_pc:")
        a(f"s_and_b32 s{S_T0}, s{S_J}, 1")
        a(f"s_lshl_b32 s{S_T0}, s{S_T0}, 13")
        a(f"v_add_u32 v{V_T2}, s{S_T0}, v{V_KO}")
        a(f"v_min_u32 v{V_T2}, L_end-L_pc-16, v{V_T2}")
        a(f"v_mov_b32 v{V_T3}, s5")
        a(f"v_add_co_u32 v{V_T2}, vcc, s4, v{V_T2}")
        a(f"v_addc_co_u32 v{V_T3}, vcc, 0, v{V_T3}, vcc")
        a(f"global_load_dwordx4 {r4(SCR)}, v[{V_T2}:{V_T3}], off", tag="cpf")
    a(f"v_and_b32 v{V_T0}, 1, v{V_L}")
    a(f"v_lshlrev_b32 v{V_T0}, 4, v{V_T0}")
    a(f"v_mov_b32 v{V_T1}, 0xffff")
    a(f"v_lshlrev_b32 v{V_T0}, v{V_T0}, v{V_T1}")
    a(f"v_bfe_u32 v{V_T1}, v{V_L}, 1, 2")
    for d in range(4):
        a(f"v_cmp_eq_u32 s[{4+2*(d&1)}:{5+2*(d&1)}], {d}, v{V_T1}")
        if d: a(f"v_cndmask_b32 v{V_M+d-1}, 0, v{V_T0}, s[{4+2*((d-1)&1)}:{5+2*((d-1)&1)}]")
    a(f"v_cndmask_b32 v{V_M+3}, 0, v{V_T0}, s[6:7]")
    a(f"v_mov_b32 v{V_T0}, 0"); a(f"v_mov_b32 v{V_T1}, 0"); a(f"v_mov_b32 v{V_T2}, 0x3f803f80")
    while cur[0] < c["DSq"]:
        cur[0] += 1; step()
    for _ in range(c["lnstep"]): step()
    a.wait("xc")
    for t in range(6):
        a(f"v_dot2c_f32_bf16 v{V_T0}, v{V_XS+t}, v{V_T2}")
        a(f"v_dot2c_f32_bf16 v{V_T1}, v{V_XS+t}, v{V_XS+t}")
    wred("v_add_f32", [V_T0, V_T1], [S_T0, S_T1])
    a(f"v_mov_b32 v{V_T1}, 0x3ae38e39")
    a(f"v_mul_f32 v{V_T0}, s{S_T0}, v{V_T1}")
    a(f"v_mul_f32 v{V_T1}, s{S_T1}, v{V_T1}")
    ln_finish(V_T0, V_T1)
    for k in range(2):
        a(f"v_lshlrev_b32 v{V_C+k}, 16, v{V_XS+6+k}")
    for k in range(2):
        a(f"v_sub_f32 v{V_C+k}, v{V_C+k}, v{V_T0}")
    for k in range(2):
        bf16r(V_C + k, V_C + k)
    for k in range(2):
        a(f"v_mul_f32 v{V_C+k}, v{V_C+k}, v{V_T1}")
    for k in range(2):
        a(f"v_cvt_pk_bf16_f32 v{V_C+k}, v{V_C+k}, v{V_C+k}")
    stamp("ln")
    def gemv_dpp(coef, i, tag, first=False):
        for d in range(4):
            a(f"v_and_b32_dpp v{V_A+d}, v{coef}, v{V_M+d} row_newbcast:{i} {FULL}")
        a.wait(tag)
        a(f"v_mfma_f32_16x16x32_bf16 {r4(V_ACC)}, {r4(V_A)}, {r4(slot[tag])}, {0 if first else r4(V_ACC)}")
        release(tag)
    def clear_setup():
        a("s_waitcnt lgkmcnt(0)")
        for b, n in ((sV, 0x4000000), (sWS, WS_SIZE), (sD, 256)):
            a(f"s_mov_b32 s{b+2}, {hex(n)}")
            a(f"s_mov_b32 s{b+3}, 0x20000")
        a(f"v_cmp_gt_u32 vcc, {168 if RM else 128}, v0")
        a(f"s_mul_i32 s{S_T0}, s2, {2688 if RM else 2048}")
        for k in range(4):
            a(f"v_mov_b32 v{V_R+k}, -1")
        a(f"v_cndmask_b32 v{V_T0}, v{V_OOB}, v{V_KO}, vcc")
        a(f"buffer_store_dwordx4 {r4(V_R)}, v{V_T0}, {srd(sWS)}, s{S_T0} offen sc1", tag="clr")
        if DET:
            a(f"s_lshl3_add_u32 s{S_T0}, s{S_XG}, s{S_W}")
            a(f"s_lshl_b32 s{S_T0}, s{S_T0}, 7")
            a(f"s_add_u32 s{S_PO}, s{S_T0}, {real(WS_PR)}")
            a(f"s_lshr_b32 s{S_T1}, s2, 2")
            a(f"s_cmp_eq_u32 s{S_T1}, 62")
            a(f"s_cselect_b32 s{S_T1}, 2, 0")
            a(f"v_cmp_gt_u32 vcc, s{S_T1}, v{V_L}")
            a(f"v_lshlrev_b32 v{V_T0}, 13, v{V_L}")
            a(f"v_cndmask_b32 v{V_T0}, v{V_OOB}, v{V_T0}, vcc")
            a(f"buffer_store_dword v{V_R}, v{V_T0}, {srd(sWS)}, s{S_PO} offen sc1", tag="clr")
        a(f"s_mul_i32 s{S_T0}, s{S_XG}, 9")
        a(f"s_add_u32 s{S_T1}, s{S_T0}, s{S_J}")
        a(f"s_add_u32 s{S_T0}, s{S_T0}, s{S_T1}")
        a(f"s_sub_u32 s{S_T0}, s{S_T0}, 9")
        a(f"s_cmp_lt_u32 s{S_J}, 9")
        a(f"s_cselect_b32 s{S_IDX}, s{S_T1}, s{S_T0}")
        a(f"s_lshl4_add_u32 s{S_T1}, s{S_SLOT}, {real(WS_ML)}")
        a(f"v_mov_b32 v{V_SML}, s{S_T1}")
        a(f"v_cmp_eq_u32 vcc, {3*64+32}, v0")
        a(f"s_lshl_b32 s{S_T0}, s{S_SLOT}, 9")
        sremap(S_T0, S_T1)
        a(f"v_cndmask_b32 v{V_SML}, v{V_OOB}, v{V_SML}, vcc")
        a(f"v_and_b32 v{V_T0}, 7, v{V_L}")
        a(f"v_bfe_u32 v{V_T1}, v{V_L}, 3, 1")
        a(f"v_lshl_add_u32 v{V_T0}, v{V_T0}, 1, v{V_T1}")
        a(f"v_bfe_u32 v{V_T1}, v{V_L}, 4, 1")
        a(f"v_lshl_add_u32 v{V_T0}, v{V_T0}, 1, v{V_T1}")
        a(f"v_lshlrev_b32 v{V_X}, 2, v{V_T0}")
        a(f"s_lshl_b32 s{S_T1}, s{S_W}, 7")
        a(f"s_add_u32 s{S_T0}, s{S_T0}, s{S_T1}")
        a(f"v_add_u32 v{V_T0}, s{S_T0}, v{V_X}")
        a(f"v_and_b32 v{V_T1}, 0x120, v0")
        a(f"v_cmp_eq_u32 vcc, 0, v{V_T1}")
        a(f"s_mov_b32 s{S_MA}, 0xaaaaaaaa"); a(f"s_mov_b32 s{S_MA+1}, 0xaaaaaaaa")
        a(f"v_cndmask_b32 v{V_SO}, v{V_OOB}, v{V_T0}, vcc")
        a(f"s_mov_b32 s{S_MC}, 0xcccccccc"); a(f"s_mov_b32 s{S_MC+1}, 0xcccccccc")
        a(f"v_and_b32 v{V_T0}, 1, v{V_G}")
        a(f"v_lshlrev_b32 v{V_T0}, 4, v{V_T0}")
        a(f"v_lshl_add_u32 v{V_T0}, v{V_I}, 5, v{V_T0}")
        a(f"s_lshl_b32 s{S_T0}, s{S_W}, 9")
        a(f"v_add_u32 v{V_W1}, s{S_T0}, v{V_T0}")
        a(f"s_lshl_b32 s{S_T1}, s{S_W}, 2")
        a(f"v_mov_b32 v{V_W2}, s{S_T1}")
        a(f"s_mov_b32 s{S_SPIN}, {c['spin']}")
    def signal():
        assert not a.pending("clr")
        if DET:
            a(f"s_lshr_b32 s{S_T2}, s2, 2")
            a(f"s_cmp_lg_u32 s{S_T2}, 62")
            a("s_cbranch_scc1 L_norace")
            a(f"s_and_b32 s{S_T1}, s{S_W}, 1")
            a(f"s_lshl_b32 s{S_T1}, s{S_T1}, 13")
            a(f"s_add_u32 s{S_T0}, s{S_PO}, s{S_T1}")
            a("s_memtime s[4:5]")
            a("s_waitcnt lgkmcnt(0)")
            a(f"s_load_dword s7, s[{sWS}:{sWS+1}], s{S_T0} glc")
            a("s_waitcnt lgkmcnt(0)")
            a("s_memtime s[6:7]")
            a("s_waitcnt lgkmcnt(0)")
            a(f"s_sub_u32 s4, s6, s4")
            a(f"v_mov_b32 v{V_T0}, s4")
            a(f"ds_write_b32 v{V_W2}, v{V_T0} offset:{L_VT}")
            a("s_waitcnt lgkmcnt(0)")
            a("L_norace:")
        a("s_barrier")
        if DET:
            a(f"s_cmp_lg_u32 s{S_T2}, 62")
            a("s_cbranch_scc1 L_notab")
            a(f"v_mov_b32 v{V_T0}, 0")
            a(f"ds_read_b128 {r4(V_R)}, v{V_T0} offset:{L_VT}")
            a(f"ds_read_b128 {r4(V_R+4)}, v{V_T0} offset:{L_VT+16}")
            a("s_waitcnt lgkmcnt(0)")
            a(f"v_min3_u32 v{V_R}, v{V_R}, v{V_R+2}, v{V_R+4}")
            a(f"v_min3_u32 v{V_R+1}, v{V_R+1}, v{V_R+3}, v{V_R+5}")
            a(f"v_min_u32 v{V_R}, v{V_R}, v{V_R+6}")
            a(f"v_min_u32 v{V_R+1}, v{V_R+1}, v{V_R+7}")
            a(f"v_cmp_lt_u32 vcc, v{V_R+1}, v{V_R}")
            a(f"v_cndmask_b32 v{V_R}, 1, 9, vcc")
            a("L_notab:")
            a(f"s_lshl2_add_u32 s{S_T0}, s{S_XG}, 16")
            a(f"s_cmp_eq_u32 s{S_T2}, 62")
            a(f"s_cselect_b32 s{S_T0}, s{S_T0}, {hex(OOB)}")
            a(f"v_cmp_eq_u32 vcc, 0, v0")
            a(f"v_mov_b32 v{V_T1}, s{S_T0}")
            a(f"v_cndmask_b32 v{V_T1}, v{V_OOB}, v{V_T1}, vcc")
            a(f"buffer_store_dword v{V_R}, v{V_T1}, {srd(sD)}, 0 offen sc1", tag="tabp")
        a(f"v_cmp_eq_u32 vcc, 0, v0")
        a(f"s_and_b32 s{S_T0}, s2, 3")
        a(f"s_lshl_b32 s{S_T0}, s{S_T0}, 6")
        a(f"v_mov_b32 v{V_T2}, s{S_T0}")
        a(f"v_cndmask_b32 v{V_T1}, v{V_OOB}, v{V_T2}, vcc")
        a(f"v_mov_b32 v{V_T2}, 1")
        a(f"buffer_atomic_add v{V_T2}, v{V_T1}, {srd(sD)}, 0 offen sc1", tag="sig")
    qdone = 0; ns = 0
    while qdone < 18:
        while ("Q", qdone) in landed:
            landed.remove(("Q", qdone))
            gemv_dpp(V_C + (qdone >> 4), qdone & 15, ("Q", qdone), first=(qdone == 0)); qdone += 1
        if ns == c["clrstep"]: clear_setup()
        if ns == c["clrstep"] + cur[0] + 1: signal()
        ns += 1
        if qdone < 18: step()
    assert ns > c["clrstep"] + cur[0] + 1
    a(f"v_and_b32 v{V_T0}, 3, v{V_L}")
    a(f"v_lshlrev_b32 v{V_QO}, 6, v{V_T0}")
    a(f"v_mov_b32 v{V_S+1}, 64")
    if DET:
        a(f"v_and_b32 v{V_T1}, 8, v{V_L}")
        a(f"v_cmp_ne_u32 vcc, 0, v{V_T1}")
        a(f"v_lshl_add_u32 v{V_T0}, v{V_T0}, 2, 16")
        a(f"v_cndmask_b32 v{V_QO}, v{V_QO}, v{V_T0}, vcc")
        a(f"v_cndmask_b32 v{V_XS}, v{V_S+1}, 1, vcc")
    else:
        a(f"v_mov_b32 v{V_XS}, 64")
    a(f"buffer_load_dword v{V_CNT}, v{V_QO}, {srd(sD)}, 0 offen sc1", tag="cnt")
    boost()
    a(f"ds_write_b128 v{V_W1}, {r4(V_ACC)} offset:{L_QP}")
    for k in range(16):
        a(f"v_mov_b32 v{V_R+k}, 0")
    a("s_waitcnt lgkmcnt(0)")
    a("s_barrier")
    a(f"s_cmp_lg_u32 s{S_W}, 0")
    a("s_cbranch_scc1 L_q2")
    TT = SCR
    for u in range(8):
        a(f"ds_read_b64 {r2(TT+2*u)}, v{V_T5} offset:{L_QP+512*u}")
    a("s_waitcnt lgkmcnt(0)")
    st = 1
    while st < 8:
        for u in range(0, 8, 2 * st):
            for k in range(2):
                a(f"v_add_f32 v{TT+2*u+k}, v{TT+2*u+k}, v{TT+2*(u+st)+k}")
        st *= 2
    a(f"v_cvt_pk_bf16_f32 v{V_T1}, v{TT}, v{TT+1}")
    a(f"v_lshlrev_b32 v{V_T0}, 2, v{V_L}")
    a(f"ds_write_b32 v{V_T0}, v{V_T1} offset:{L_QB}")
    a("s_waitcnt lgkmcnt(0)")
    a("L_q2:")
    a("s_barrier")
    a(f"v_lshlrev_b32 v{V_T0}, 4, v{V_I}")
    a(f"ds_read_b128 {r4(V_Q)}, v{V_T0} offset:{L_QB}")
    a("s_waitcnt lgkmcnt(0)")
    stamp("q")
    cur[0] = DS
    def treduce(dst):
        R = V_R
        for i in range(8):
            a(f"v_add_f32_dpp v{R+i}, v{R+i}, v{R+i} row_ror:8 row_mask:0xf bank_mask:0x3")
        for i in range(8):
            a(f"v_add_f32_dpp v{R+i}, v{R+i+8}, v{R+i+8} row_ror:8 row_mask:0xf bank_mask:0xc")
        for i in range(4):
            a(f"v_add_f32_dpp v{R+i}, v{R+i}, v{R+i} row_shl:4 row_mask:0xf bank_mask:0x5")
        for i in range(4):
            a(f"v_add_f32_dpp v{R+i}, v{R+i+4}, v{R+i+4} row_shr:4 row_mask:0xf bank_mask:0xa")
        for i in range(2):
            a(f"v_cndmask_b32 v{R+8+i}, v{R+i}, v{R+i+2}, s[{S_MC}:{S_MC+1}]")
            a(f"v_cndmask_b32 v{R+10+i}, v{R+i+2}, v{R+i}, s[{S_MC}:{S_MC+1}]")
        for i in range(2):
            a(f"v_add_f32_dpp v{R+i}, v{R+10+i}, v{R+8+i} quad_perm:[2,3,0,1] {FULL}")
        a(f"v_cndmask_b32 v{R+8}, v{R}, v{R+1}, s[{S_MA}:{S_MA+1}]")
        a(f"v_cndmask_b32 v{R+9}, v{R+1}, v{R}, s[{S_MA}:{S_MA+1}]")
        a(f"v_add_f32_dpp v{dst}, v{R+9}, v{R+8} quad_perm:[1,0,3,2] {FULL}")
    kdone = 0
    while kdone < N:
        nb = 0
        while ("K", kdone) in landed and nb < c["B"]:
            i = kdone; landed.remove(("K", i)); b = slot[("K", i)]
            for d in range(4):
                a(f"v_dot2c_f32_bf16 v{V_R+(i&15)}, v{b+d}, v{V_Q+d}")
            release(("K", i))
            if (i & 15) == 15:
                if i == N - 1: boost()
                treduce(V_S + (i >> 4))
                if i != N - 1:
                    for k in range(16):
                        a(f"v_mov_b32 v{V_R+k}, 0")
            kdone += 1; nb += 1
        if kdone < N: step()
    stamp("K")
    a.wait("cnt")
    a(f"L_cnt:")
    a(f"v_cmp_gt_u32 vcc, v{V_XS}, v{V_CNT}")
    a(f"s_cbranch_vccz L_cntok")
    a.raw(f"buffer_load_dword v{V_CNT}, v{V_QO}, {srd(sD)}, 0 offen sc1")
    a("s_waitcnt vmcnt(0)")
    a(f"s_sub_u32 s{S_SPIN}, s{S_SPIN}, 1")
    a(f"s_cbranch_scc0 L_cnt")
    a(f"L_cntok:")
    if DET:
        a(f"v_cmp_lt_u32 vcc, 5, v{V_CNT}")
        a(f"s_nop 0")
        a(f"s_bfe_u32 s{S_SM}, vcc_lo, 0x40008")
        a(f"s_xor_b32 s{S_T0}, s{S_SM}, 15")
        a(f"s_lshl4_add_u32 s{S_SM}, s{S_T0}, s{S_SM}")
    else:
        a(f"s_mov_b32 s{S_SM}, {c['side'] or 0}")
    a(f"s_lshr_b32 s{S_SIDE}, s{S_SM}, s{S_XG}")
    a(f"s_and_b32 s{S_SIDE}, s{S_SIDE}, 1")
    a(f"s_lshl_b32 s{S_SIDE}, s{S_SIDE}, 13")
    a(f"s_mov_b32 s{S_T1}, {hex(SCALE)}")
    for k in range(2):
        bf16r(V_S + k, V_S + k)
    for k in range(2):
        a(f"v_mul_f32 v{V_S+k}, s{S_T1}, v{V_S+k}")
    for k in range(2):
        bf16r(V_S + k, V_S + k)
    a(f"v_max_f32 v{V_T0}, v{V_S}, v{V_S+1}")
    wred("v_max_f32", [V_T0], [S_T0])
    a(f"v_mov_b32 v{V_T0}, s{S_T0}")
    a(f"ds_write_b32 v{V_W2}, v{V_T0} offset:{L_MX}")
    a("s_waitcnt lgkmcnt(0)")
    a("s_barrier")
    a(f"v_mov_b32 v{V_T0}, 0")
    a(f"ds_read_b128 {r4(V_R)}, v{V_T0} offset:{L_MX}")
    a(f"ds_read_b128 {r4(V_R+4)}, v{V_T0} offset:{L_MX+16}")
    a("s_waitcnt lgkmcnt(0)")
    a(f"v_max3_f32 v{V_MM}, v{V_R}, v{V_R+1}, v{V_R+2}")
    a(f"v_max3_f32 v{V_MM}, v{V_MM}, v{V_R+3}, v{V_R+4}")
    a(f"v_max3_f32 v{V_MM}, v{V_MM}, v{V_R+5}, v{V_R+6}")
    a(f"v_max_f32 v{V_MM}, v{V_MM}, v{V_R+7}")
    a(f"s_mov_b32 s{S_T1}, {hex(LOG2E)}")
    for k in range(2):
        a(f"v_sub_f32 v{V_S+k}, v{V_S+k}, v{V_MM}")
    for k in range(2):
        a(f"v_mul_f32 v{V_S+k}, s{S_T1}, v{V_S+k}")
    for k in range(2):
        a(f"v_exp_f32 v{V_S+k}, v{V_S+k}")
    step()
    for k in range(2):
        a(f"v_cvt_pk_bf16_f32 v{V_C+k}, v{V_S+k}, v{V_S+k}")
    a(f"v_add_f32 v{V_T0}, v{V_S}, v{V_S+1}")
    wred("v_add_f32", [V_T0], [S_T0])
    a(f"v_mov_b32 v{V_T0}, s{S_T0}")
    a(f"ds_write_b32 v{V_W2}, v{V_T0} offset:{L_LW}")
    vdone = [0]
    def vphase(extra, upto):
        def eat(i):
            gemv_dpp(V_C + (i >> 4), i & 15, ("V", i), first=(i == 0))
            for f in extra.get(i, []): f()
        while vdone[0] < upto:
            nb = 0
            while vdone[0] < upto and ("V", vdone[0]) in landed and nb < c["B"]:
                landed.remove(("V", vdone[0])); eat(vdone[0]); vdone[0] += 1; nb += 1
            if vdone[0] < upto:
                if nxt[0] < len(seq): step()
                else:
                    eat(vdone[0]); vdone[0] += 1
    VPR = V_S; VPO = V_R + 14; VPW = V_R + 15
    def common_setup():
        a(f"v_lshrrev_b32 v{V_T0}, 3, v{V_L}")
        a(f"v_lshlrev_b32 v{V_T0}, 9, v{V_T0}")
        a(f"v_and_b32 v{V_T1}, 7, v{V_L}")
        a(f"v_lshl_add_u32 v{V_T0}, v{V_T1}, 4, v{V_T0}")
        a(f"s_and_b32 s{S_T0}, s{S_W}, 3")
        a(f"s_lshl_b32 s{S_T0}, s{S_T0}, 7")
        a(f"v_add_u32 v{VPR}, s{S_T0}, v{V_T0}")
        a(f"s_mov_b32 s{sWO+2}, {4096*1152}"); a(f"s_mov_b32 s{sWO+3}, 0x20000")
        for b, src, n in ((sW1, 16, 576 * 9216), (sW3, 18, 576 * 9216), (sW2, 20, 4608 * 1152), (sOUT, 22, 1152)):
            a(f"s_mov_b32 s{b}, s{src}"); a(f"s_mov_b32 s{b+1}, s{src+1}"); a(f"s_mov_b32 s{b+2}, {n}"); a(f"s_mov_b32 s{b+3}, 0x20000")
        a(f"s_add_u32 s{S_T0}, s{S_J}, 2")
        a(f"s_lshr_b32 s{S_T0}, s{S_T0}, 2")
        a(f"s_sub_u32 s{S_T0}, s{S_J}, s{S_T0}")
        a(f"s_lshl3_add_u32 s{S_T0}, s{S_T0}, s{S_W}")
        a(f"s_mul_i32 s{S_PO}, s{S_T0}, 3072")
        a(f"s_mul_i32 s{S_T1}, s{S_XG}, {512*1152}")
        a(f"s_add_u32 s{S_PO}, s{S_PO}, s{S_T1}")
        a(f"s_mul_i32 s{S_OQ}, s{S_T0}, {3*9216}")
        a(f"s_mul_i32 s{S_T1}, s{S_XG}, 1152")
        a(f"s_add_u32 s{S_OQ}, s{S_OQ}, s{S_T1}")
        a(f"s_and_b32 s{S_T1}, s{S_J}, 3")
        a(f"s_cmp_eq_u32 s{S_T1}, 1")
        a(f"s_cselect_b32 s{S_T0}, 0, 24")
        a(f"s_cselect_b32 s{S_T1}, 0, 27")
        a(f"v_cmp_gt_u32 vcc, s{S_T0}, v{V_L}")
        a(f"v_lshlrev_b32 v{V_T0}, 7, v{V_L}")
        a(f"v_mul_u32_u24 v{V_T1}, 57, v{V_L}")
        a(f"v_cndmask_b32 v{VPO}, v{V_OOB}, v{V_T0}, vcc")
        a(f"v_lshrrev_b32 v{V_T1}, 9, v{V_T1}")
        a(f"v_cmp_gt_u32 vcc, s{S_T1}, v{V_L}")
        a(f"v_mul_u32_u24 v{V_T1}, {9216-1152}, v{V_T1}")
        a(f"v_add_u32 v{V_T0}, v{V_T0}, v{V_T1}")
        a(f"v_cndmask_b32 v{VPW}, v{V_OOB}, v{V_T0}, vcc")
    def ldP(t):
        if t == 2: a(f"buffer_load_dword v{SCR+10}, v{VPO}, {srd(sWO)}, s{S_PO} offen", tag=("P", t))
        else: a(f"buffer_load_dword v{SCR+8+t}, v{VPW}, {srd(sW1 if t == 0 else sW3)}, s{S_OQ} offen", tag=("P", t))
    issuers["P"] = ldP
    for t in (2, 0, 1): seq.append(("P", t))
    def ml_publish():
        if c["boost"]: step(DS + 1)
        a("s_waitcnt lgkmcnt(0)")
        a("s_barrier")
        a(f"v_mov_b32 v{V_T0}, 0")
        a(f"ds_read_b128 {r4(SCR)}, v{V_T0} offset:{L_LW}")
        a(f"ds_read_b128 {r4(SCR+4)}, v{V_T0} offset:{L_LW+16}")
        a(f"v_min_u32 v{V_T2}, -2, v{V_MM}")
        a("s_waitcnt lgkmcnt(0)")
        for k in range(4):
            a(f"v_add_f32 v{SCR+k}, v{SCR+k}, v{SCR+4+k}")
        a(f"v_add_f32 v{SCR}, v{SCR}, v{SCR+1}")
        a(f"v_add_f32 v{SCR+2}, v{SCR+2}, v{SCR+3}")
        a(f"v_add_f32 v{V_T3}, v{SCR}, v{SCR+2}")
        a(f"v_min_u32 v{V_T3}, -2, v{V_T3}")
        a(f"buffer_store_dwordx2 {r2(V_T2)}, v{V_SML}, {srd(sWS)}, 0 offen sc1", tag="mlp")
    def publish():
        stamp("V")
        a(f"ds_write_b128 v{V_W1}, {r4(V_ACC)} offset:{L_OP}")
        a("s_waitcnt lgkmcnt(0)")
        a("s_barrier")
        a(f"ds_read_b128 {r4(SCR)}, v{VPR} offset:{L_OP}")
        a("s_waitcnt lgkmcnt(0)")
        tred4(SCR)
        a(f"v_min_u32 v{SCR}, -2, v{SCR}")
        a(f"buffer_store_dword v{SCR}, v{V_SO}, {srd(sWS)}, s{S_SIDE} offen sc1", tag="pub")
        stamp("pub")
    def chk(regs, t=V_T0):
        rs = list(regs)
        if len(rs) == 1:
            a(f"v_cmp_eq_u32 vcc, -1, v{rs[0]}")
            return
        if len(rs) % 2 == 0:
            a(f"v_max_u32 v{t}, v{rs[0]}, v{rs[1]}"); rs = rs[2:]
        else:
            a(f"v_max3_u32 v{t}, v{rs[0]}, v{rs[1]}, v{rs[2]}"); rs = rs[3:]
        while rs:
            a(f"v_max3_u32 v{t}, v{t}, v{rs[0]}, v{rs[1]}"); rs = rs[2:]
        a(f"v_cmp_eq_u32 vcc, -1, v{t}")
    def poll(lbl, loads, regs, sleep=0):
        a(f"L_poll{lbl}:")
        for l in loads: a(l)
        a.wait_all()
        chk(regs)
        a(f"s_cbranch_vccz L_pollok{lbl}")
        if sleep: a(f"s_sleep {sleep}")
        a(f"s_sub_u32 s{S_SPIN}, s{S_SPIN}, 1")
        a(f"s_cbranch_scc0 L_poll{lbl}")
        a(f"L_pollok{lbl}:")
    def spoll(lbl, loads, regsets):
        allr = [r for rs in regsets for r in rs]
        a(f"L_poll{lbl}:")
        a.wait_all()
        chk(allr)
        a(f"s_cbranch_vccz L_pollok{lbl}")
        for u, (l, rs) in enumerate(zip(loads, regsets)):
            chk(rs)
            a(f"s_cbranch_vccz L_sk{lbl}_{u}")
            a.raw(l)
            a(f"L_sk{lbl}_{u}:")
        a(f"s_sub_u32 s{S_SPIN}, s{S_SPIN}, 1")
        a(f"s_cbranch_scc0 L_poll{lbl}")
        a("s_waitcnt vmcnt(0)")
        a(f"L_pollok{lbl}:")
    def gate(lbl, load, reg, maxbad, sleep):
        a(f"L_gate{lbl}:")
        a(load)
        a.wait_all()
        a(f"v_cmp_eq_u32 vcc, -1, v{reg}")
        a(f"s_bcnt1_i32_b64 s{S_T0}, vcc")
        a(f"s_cmp_le_u32 s{S_T0}, {maxbad}")
        a(f"s_cbranch_scc1 L_gateok{lbl}")
        if sleep: a(f"s_sleep {sleep}")
        a(f"s_sub_u32 s{S_SPIN}, s{S_SPIN}, 1")
        a(f"s_cbranch_scc0 L_gate{lbl}")
        a(f"L_gateok{lbl}:")
    def finish(role):
        if c["stamps"]:
            STAMPS[role] = list(stn)
            a("s_waitcnt lgkmcnt(0)")
            a(f"s_lshl_b32 s{S_T0}, s2, 3"); a(f"s_add_u32 s{S_T0}, s{S_T0}, s{S_W}"); a(f"s_lshl_b32 s{S_T0}, s{S_T0}, 7")
            a(f"s_add_u32 s{S_T0}, s{S_T0}, {WS_ST}")
            a(f"v_mov_b32 v{V_T0}, s{S_T0}")
            a(f"v_cmp_eq_u32 vcc, 0, v{V_L}")
            a(f"s_and_saveexec_b64 s[{S_E}:{S_E+1}], vcc")
            for k in range(len(stn)):
                a(f"v_mov_b32 v{V_T2}, s{S_STAMP+2*k}"); a(f"v_mov_b32 v{V_T2+1}, s{S_STAMP+2*k+1}")
                a(f"buffer_store_dwordx2 {r2(V_T2)}, v{V_T0}, {srd(sWS)}, 0 offen offset:{8*k}")
            a(f"v_mov_b32 v{V_T2}, s{S_SPIN}")
            a(f"buffer_store_dword v{V_T2}, v{V_T0}, {srd(sWS)}, 0 offen offset:120")
            a(f"v_mov_b32 v{V_T2}, s{S_SM}")
            a(f"buffer_store_dword v{V_T2}, v{V_T0}, {srd(sWS)}, 0 offen offset:112")
        a("s_endpgm")
    MT = c["mltile"]; RD = c["RD"]
    vphase({1: [common_setup], MT: [ml_publish]}, RD)
    a(f"s_cmp_lt_u32 s{S_J}, 9")
    a("s_cbranch_scc1 L_roleO")
    a(f"s_cmp_lt_u32 s{S_J}, 27")
    a("s_cbranch_scc1 L_roleF")
    st0 = (list(a.vm), list(free), dict(slot), nxt[0], list(stn), list(landed), list(seq), vdone[0], wtd[0])
    def restore():
        a.vm = list(st0[0]); free[:] = st0[1]; slot.clear(); slot.update(st0[2]); nxt[0] = st0[3]; stn[:] = st0[4]
        landed[:] = st0[5]; seq[:] = st0[6]; vdone[0] = st0[7]; wtd[0] = st0[8]
    A2 = [V_A, SCR]

    vphase({}, N)
    publish()
    flush_seq()
    finish("N")

    restore()
    a("L_roleO:")
    VO = V_R; VP = V_R + 1; VML = V_R + 2; VY = V_R + 3; VOUT = V_R + 5; VYS = V_R + 6
    VCW = V_R + 8; VCR = V_R + 9; VYR = V_R + 11
    VZ = [V_XS + k for k in range(5)]
    S_VAL = S_MA; S_OO = S_OK
    a(f"v_and_b32 v{V_T0}, 0x1f8, v0")
    a(f"v_lshlrev_b32 v{VCR}, 2, v{V_T0}")
    a(f"s_lshl_b32 s{S_T0}, s{S_XG}, 9")
    a(f"v_add_u32 v{V_T0}, s{S_T0}, v{V_T0}")
    a(f"v_mul_u32_u24 v{V_T0}, 1152, v{V_T0}")
    a(f"v_and_b32 v{V_T1}, 7, v{V_L}")
    a(f"v_lshl_add_u32 v{VO}, v{V_T1}, 4, v{V_T0}")
    a(f"s_lshl_b32 s{S_OO}, s{S_J}, 7")
    def ldO(t):
        b = alloc(("O", t))
        a(f"buffer_load_dwordx4 {r4(b)}, v{VO}, {srd(sWO)}, s{S_OO} offen", tag=("O", t))
        a(f"s_addk_i32 s{S_OO}, 1152")
    issuers["O"] = ldO
    for t in range(c["nOpre"]):
        seq.append(("O", t))
    def o_setup():
        a(f"s_lshr_b32 s{S_T0}, s{S_W}, 1")
        a(f"s_lshl2_add_u32 s{S_T0}, s{S_XG}, s{S_T0}")
        a(f"s_lshl_b32 s{S_T1}, s{S_T0}, 12")
        sremap(S_T1, S_T2)
        a(f"s_add_u32 s{S_T1}, s{S_T1}, s{S_SIDE}")
        a(f"v_and_b32 v{V_T0}, 127, v0")
        a(f"v_lshl_add_u32 v{VP}, v{V_T0}, 2, s{S_T1}")
        a(f"s_lshl_b32 s{S_T1}, s{S_T0}, 7")
        a(f"s_add_u32 s{S_T1}, s{S_T1}, {real(WS_ML)}")
        a(f"v_and_b32 v{V_T0}, 7, v{V_L}")
        a(f"v_lshl_add_u32 v{VML}, v{V_T0}, 4, s{S_T1}")
        a(f"v_bfe_u32 v{V_T1}, v{V_L}, 3, 1")
        a(f"v_lshl_add_u32 v{VML}, v{V_T1}, 2, v{VML}")
        a(f"v_lshlrev_b32 v{VCW}, 2, v0")
        a(f"v_lshrrev_b32 v{V_T1}, 3, v{V_I}")
        a(f"v_lshrrev_b32 v{V_T2}, 1, v{V_G}")
        a(f"v_cmp_eq_u32 s[{S_VAL}:{S_VAL+1}], v{V_T1}, v{V_T2}")
        a(f"v_lshrrev_b32 v{V_T1}, 3, v{V_L}")
        a(f"v_lshlrev_b32 v{V_T1}, 8, v{V_T1}")
        a(f"v_lshl_add_u32 v{V_T1}, v{V_T0}, 4, v{V_T1}")
        a(f"s_and_b32 s{S_T0}, s{S_W}, 1")
        a(f"s_lshl_b32 s{S_T0}, s{S_T0}, 7")
        a(f"v_add_u32 v{VYR}, s{S_T0}, v{V_T1}")
        a(f"s_mul_i32 s{S_T1}, s{S_XG}, 43")
        a(f"s_lshr_b32 s{S_T1}, s{S_T1}, 7")
        a(f"s_mul_i32 s{S_T1}, s{S_T1}, {yg(3) - 3*2304}")
        a(f"s_add_u32 s{S_T0}, s{S_T0}, s{S_T1}")
        a(f"s_lshl_b32 s{S_T1}, s{S_IDX}, 8")
        a(f"s_add_u32 s{S_T0}, s{S_T0}, s{S_T1}")
        a(f"s_add_u32 s{S_T0}, s{S_T0}, {real(WS_Y)}")
        a(f"v_add_u32 v{V_T1}, s{S_T0}, v{V_X}")
        a(f"v_and_b32 v{V_T2}, 0x1a0, v0")
        a(f"v_cmp_eq_u32 vcc, 0, v{V_T2}")
        a(f"s_movk_i32 s4, 0x2000")
        a(f"v_cndmask_b32 v{VYS}, v{V_OOB}, v{V_T1}, vcc")
        a(f"v_and_b32 v{V_T0}, 1, v{V_L}")
        a(f"v_bfe_u32 v{V_T1}, v{V_L}, 3, 1")
        a(f"v_bfe_u32 v{V_T2}, v{V_L}, 2, 1")
        a(f"v_lshl_add_u32 v{V_T1}, v{V_T1}, 1, v{V_T2}")
        a(f"v_lshl_add_u32 v{V_T0}, v{V_T0}, 2, v{V_T1}")
        if RM:
            a(f"s_and_b32 s{S_T0}, s{S_XG}, 3")
            a(f"s_mul_i32 s{S_T0}, s{S_T0}, 9")
            a(f"s_add_u32 s5, s{S_T0}, s{S_J}")
            a(f"s_lshr_b32 s{S_T0}, s{S_SIDE}, 10")
            a(f"s_lshl4_add_u32 s{S_T0}, s5, s{S_T0}")
        else:
            a(f"s_mov_b32 s5, s{S_IDX}")
            a(f"s_lshl_b32 s{S_T0}, s{S_IDX}, 3")
        a(f"v_add_u32 v{V_T0}, s{S_T0}, v{V_T0}")
        a(f"v_lshlrev_b32 v{VOUT}, 1, v{V_T0}")
        a(f"buffer_load_ushort v{V_X}, v{VOUT}, {srd(sX)}, 0 offen", tag="xr")
        a(f"v_bfe_u32 v{V_T1}, v{V_L}, 1, 1")
        a(f"v_lshl_add_u32 v{V_T1}, v{V_G}, 1, v{V_T1}")
        ygroup(V_T2, V_T1)
        a(f"s_add_u32 s{S_T1}, s{S_SIDE}, {real(WS_Y)}")
        a(f"v_lshl_add_u32 v{V_T2}, v{V_T0}, 2, v{V_T2}")
        a(f"v_add_u32 v{VY}, s{S_T1}, v{V_T2}")
        a(f"s_mul_i32 s{S_T0}, s5, 4608")
        a(f"s_add_u32 s{S_T0}, s{S_T0}, {WS_Z}")
        a(f"v_lshl_add_u32 v{V_T0}, v{V_L}, 4, s{S_T0}")
        for t in range(5):
            if t: a(f"v_add_u32 v{V_T0}, 0x400, v{V_T0}")
            vremap(VZ[t], V_T0, V_T1, S_SIDE)
        a(f"v_cmp_gt_u32 vcc, 32, v{V_L}")
        a(f"v_and_b32 v{V_T0}, 0x32, v{V_L}")
        a(f"v_cndmask_b32 v{VZ[4]}, v{V_OOB}, v{VZ[4]}, vcc")
        a(f"v_cmp_eq_u32 vcc, 0, v{V_T0}")
        a(f"s_mov_b32 s{S_T1}, {hex(LOG2E)}")
        a(f"v_cndmask_b32 v{VOUT}, v{V_OOB}, v{VOUT}, vcc")
    vphase({RD: [o_setup]}, N)
    publish()
    flush_seq()
    for t in range(c["nOpre"], 8): ldO(t)
    P = [alloc(("p", u)) for u in range(3)]
    regs = [P[0] + k for k in range(4)] + [P[1] + k for k in range(4)]
    ol = [f"buffer_load_dword v{regs[s_]}, v{VP}, {srd(sWS)}, 0 offen offset:{512*s_} sc1" for s_ in range(8)]
    Mv, Lv = P[2], P[2] + 1
    a("L_mlp:")
    a(f"buffer_load_dword v{Mv}, v{VML}, {srd(sWS)}, 0 offen sc1", tag="ml")
    for l in ol: a(l)
    a.wait("ml")
    chk([Mv])
    a("s_cbranch_vccz L_mlok")
    a("s_waitcnt vmcnt(0)")
    a(f"s_sub_u32 s{S_SPIN}, s{S_SPIN}, 1")
    a("s_cbranch_scc0 L_mlp")
    a("L_mlok:")
    a(f"v_mov_b32_dpp v{Lv}, v{Mv} row_ror:8 {FULL}")
    WT = V_T4
    a(f"v_max_f32_dpp v{WT}, v{Mv}, v{Mv} quad_perm:[1,0,3,2] {FULL}")
    a(f"v_max_f32_dpp v{WT}, v{WT}, v{WT} quad_perm:[2,3,0,1] {FULL}")
    a(f"v_max_f32_dpp v{WT}, v{WT}, v{WT} row_half_mirror {FULL}")
    a(f"v_sub_f32 v{WT}, v{Mv}, v{WT}")
    a(f"v_mul_f32 v{WT}, s{S_T1}, v{WT}")
    a(f"v_exp_f32 v{WT}, v{WT}")
    a(f"v_mul_f32 v{V_T1}, v{WT}, v{Lv}")
    a(f"v_add_f32_dpp v{V_T1}, v{V_T1}, v{V_T1} quad_perm:[1,0,3,2] {FULL}")
    a(f"v_add_f32_dpp v{V_T1}, v{V_T1}, v{V_T1} quad_perm:[2,3,0,1] {FULL}")
    a(f"v_add_f32_dpp v{V_T1}, v{V_T1}, v{V_T1} row_half_mirror {FULL}")
    a(f"v_rcp_f32 v{V_T1}, v{V_T1}")
    a(f"v_mul_f32 v{WT}, v{WT}, v{V_T1}")
    spoll("O1", ol, [[r] for r in regs])
    a(f"v_mul_f32_dpp v{V_T1}, v{WT}, v{regs[0]} row_newbcast:0 {FULL}")
    for s_ in range(1, 8):
        a(f"v_fmac_f32_dpp v{V_T1}, v{WT}, v{regs[s_]} row_newbcast:{s_} {FULL}")
    stamp("got1")
    a(f"v_cvt_pk_bf16_f32 v{V_T1}, v{V_T1}, v{V_T1}")
    a(f"ds_write_b32 v{VCW}, v{V_T1} offset:{L_OC}")
    a(f"ds_read_b128 {r4(P[0])}, v{VCR} offset:{L_OC}")
    a(f"ds_read_b128 {r4(P[1])}, v{VCR} offset:{L_OC+16}")
    a("s_waitcnt lgkmcnt(0)")
    for t in range(8):
        A = A2[t & 1]
        for d in range(4):
            a(f"v_and_b32 v{A+d}, v{regs[t]}, v{V_M+d}")
        if t: a(f"v_mfma_f32_16x16x32_bf16 {r4(V_ACC)}, {r4(A2[(t-1)&1])}, {r4(slot[('O', t-1)])}, {r4(V_ACC) if t > 1 else 0}")
    a(f"v_mfma_f32_16x16x32_bf16 {r4(V_ACC)}, {r4(A2[1])}, {r4(slot[('O', 7)])}, {r4(V_ACC)}")
    a(f"s_mov_b64 exec, s[{S_VAL}:{S_VAL+1}]")
    a(f"ds_write_b128 v{V_W1}, {r4(V_ACC)} offset:{L_YP}")
    a(f"s_mov_b64 exec, -1")
    a(f"s_cmp_gt_u32 s{S_W}, 2")
    a("s_waitcnt lgkmcnt(0)")
    a("s_barrier")
    a("s_cbranch_scc1 L_Oend")
    a(f"s_cmp_eq_u32 s{S_W}, 2")
    a("s_cbranch_scc1 L_R")
    a(f"ds_read_b128 {r4(SCR)}, v{VYR} offset:{L_YP}")
    a(f"ds_read_b128 {r4(SCR+4)}, v{VYR} offset:{L_YP+2048}")
    a("s_waitcnt lgkmcnt(0)")
    for k in range(4):
        a(f"v_add_f32 v{SCR+k}, v{SCR+k}, v{SCR+4+k}")
    tred4(SCR)
    a(f"v_min_u32 v{SCR}, -2, v{SCR}")
    a(f"buffer_store_dword v{SCR}, v{VYS}, {srd(sWS)}, 0 offen sc1")
    if RM: a(f"buffer_store_dword v{SCR}, v{VYS}, {srd(sWS)}, s4 offen sc1")
    stamp("ypub")
    a("s_branch L_Oend")
    a("L_R:")
    T = [alloc(("t", u)) for u in range(2)]
    poll("O2", [f"buffer_load_dword v{P[2]}, v{VY}, {srd(sWS)}, 0 offen sc1"], [P[2]], c["slO2"])
    def red_b1b4b5(r):
        a(f"v_add_f32_dpp v{r}, v{r}, v{r} quad_perm:[2,3,0,1] {FULL}")
        a(f"v_mov_b32 v{V_T1}, v{r}")
        a(f"v_permlane16_swap_b32 v{r}, v{V_T1}")
        a(f"v_add_f32 v{r}, v{r}, v{V_T1}")
        a(f"v_mov_b32 v{V_T1}, v{r}")
        a(f"v_permlane32_swap_b32 v{r}, v{V_T1}")
        a(f"v_add_f32 v{r}, v{r}, v{V_T1}")
    H = P[2]
    red_b1b4b5(H)
    bf16r(H, H)
    a(f"v_lshlrev_b32 v{V_X}, 16, v{V_X}")
    a(f"v_add_f32 v{H}, v{H}, v{V_X}")
    bf16r(H, H)
    zb = [alloc(("zs", u)) for u in range(5)]
    rs = [b_ + k for b_ in zb for k in range(4)]
    gate("3", f"buffer_load_dword v{T[1]}, v{VZ[0]}, {srd(sWS)}, 0 offen sc1", T[1], c["gate3"], c["gsl3"])
    poll("O3", [f"buffer_load_dwordx4 {r4(zb[t])}, v{VZ[t]}, {srd(sWS)}, 0 offen sc1" for t in range(5)], rs)
    for k in range(4):
        a(f"v_add_f32 v{T[0]+k}, v{rs[k]}, v{rs[4+k]}")
        a(f"v_add_f32 v{T[1]+k}, v{rs[8+k]}, v{rs[12+k]}")
    for k in range(4):
        a(f"v_add_f32 v{T[0]+k}, v{T[0]+k}, v{rs[16+k]}")
    for k in range(4):
        a(f"v_add_f32 v{T[0]+k}, v{T[0]+k}, v{T[1]+k}")
    stamp("got3")
    Z = T[0]
    for i in range(2):
        a(f"v_add_f32_dpp v{Z+i}, v{Z+i}, v{Z+i} row_ror:8 row_mask:0xf bank_mask:0x3")
    for i in range(2):
        a(f"v_add_f32_dpp v{Z+i}, v{Z+i+2}, v{Z+i+2} row_ror:8 row_mask:0xf bank_mask:0xc")
    a(f"v_add_f32_dpp v{Z}, v{Z}, v{Z} row_shl:4 row_mask:0xf bank_mask:0x5")
    a(f"v_add_f32_dpp v{Z}, v{Z+1}, v{Z+1} row_shr:4 row_mask:0xf bank_mask:0xa")
    red_b1b4b5(Z)
    bf16r(Z, Z)
    a(f"v_add_f32 v{Z}, v{Z}, v{H}")
    a(f"v_cvt_pk_bf16_f32 v{Z}, v{Z}, v{Z}")
    a(f"buffer_store_short v{Z}, v{VOUT}, {srd(sOUT)}, 0 offen")
    stamp("end")
    a("L_Oend:")
    finish("O")

    restore()
    a("L_roleF:")
    VF1 = V_R; VY = V_R + 2; VZS = V_R + 3; VH0 = V_R + 4; VH1 = V_R + 5; VCS = V_R + 6; VSTW = V_R + 7
    VCR = V_R + 8; VGW = V_R + 9; VGR = V_R + 10; VX0 = V_R + 11; VX1 = V_R + 12; VYB = V_R + 13; VW2R = V_X
    VG64 = V_XS; VHW = V_XS + 2; VHR = V_XS + 3; VGS = V_XS + 4; VZS2 = V_XS + 5; VSTR = V_XS + 6
    S_VAL = S_MA; S_L8 = S_MC; S_E1 = 4
    VD = [alloc("vd0"), alloc("vd1")]
    vd = [VD[0] + k for k in range(4)] + [VD[1]]
    def ldF(t):
        b = alloc(("F", t))
        a(f"global_load_dwordx4 {r4(b)}, {r2(VG64)}, off", tag=("F", t))
        if t < 8:
            a(f"v_add_co_u32 v{VG64}, vcc, 9216, v{VG64}")
            a(f"v_addc_co_u32 v{VG64+1}, vcc, 0, v{VG64+1}, vcc")
    def ldD(t):
        a(f"s_mov_b32 m0, s{S_T2}")
        a(f"s_addk_i32 s{S_T2}, 0x2000")
        a(f"buffer_load_dwordx4 v{vd[t]}, {srd(sW2)}, s{S_OK} offen nt lds", tag=("D", t))
    def f_setup_a():
        a(f"v_lshrrev_b32 v{V_T0}, 3, v0")
        a(f"v_mul_u32_u24 v{VCR}, 48, v{V_T0}")
        a(f"v_mul_u32_u24 v{V_T0}, {9*9216}, v{V_T0}")
        a(f"v_and_b32 v{V_T1}, 3, v{V_L}")
        a(f"v_lshl_add_u32 v{VF1}, v{V_T1}, 4, v{V_T0}")
        a(f"s_lshl_b32 s{S_T0}, s{S_IDX}, 6")
        a(f"s_mov_b32 s{S_E1}, 0xf0f0f0f0"); a(f"s_mov_b32 s{S_E1+1}, 0xf0f0f0f0")
        a(f"v_add_u32 v{VF1}, s{S_T0}, v{VF1}")
        a(f"v_mov_b32 v{V_T0}, s{sW1}"); a(f"v_mov_b32 v{V_T1}, s{sW3}")
        a(f"v_mov_b32 v{V_T2}, s{sW1+1}"); a(f"v_mov_b32 v{V_T3}, s{sW3+1}")
        a(f"v_cndmask_b32 v{V_T0}, v{V_T0}, v{V_T1}, s[{S_E1}:{S_E1+1}]")
        a(f"v_cndmask_b32 v{V_T2}, v{V_T2}, v{V_T3}, s[{S_E1}:{S_E1+1}]")
        a(f"v_add_co_u32 v{VG64}, vcc, v{V_T0}, v{VF1}")
        a(f"v_addc_co_u32 v{VG64+1}, vcc, 0, v{V_T2}, vcc")
        a(f"v_lshrrev_b32 v{V_T1}, 3, v{V_I}")
        a(f"v_lshrrev_b32 v{V_T2}, 1, v{V_G}")
        a(f"v_cmp_eq_u32 s[{S_VAL}:{S_VAL+1}], v{V_T1}, v{V_T2}")
        a(f"v_bfe_u32 v{V_T2}, v{V_L}, 2, 1")
        a(f"v_lshl_add_u32 v{V_T2}, v{V_T2}, 4, v{V_T1}")
        a(f"v_mul_u32_u24 v{V_T2}, 144, v{V_T2}")
        a(f"v_and_b32 v{V_T3}, 0x70, v{V_W1}")
        a(f"s_mul_i32 s{S_T0}, s{S_W}, 288")
        a(f"v_add3_u32 v{VGW}, v{V_T2}, v{V_T3}, s{S_T0}")
        a(f"v_and_b32 v{V_T2}, 7, v{V_L}")
        a(f"v_lshrrev_b32 v{V_T1}, 5, v{V_L}")
        a(f"v_lshl_add_u32 v{V_T1}, v{V_T1}, 4, v{V_T2}")
        a(f"v_mul_u32_u24 v{V_T1}, 144, v{V_T1}")
        a(f"v_bfe_u32 v{V_T3}, v{V_L}, 3, 2")
        a(f"v_add_u32 v{V_T4}, v{V_W2}, v{V_T3}")
        a(f"v_lshl_add_u32 v{VGR}, v{V_T4}, 2, v{V_T1}")
        a(f"s_and_b32 s{S_T0}, s{S_W}, 4")
        a(f"s_lshl_b32 s{S_T0}, s{S_T0}, 2")
        a(f"s_and_b32 s{S_T1}, s{S_W}, 1")
        a(f"s_lshl3_add_u32 s{S_T0}, s{S_T1}, s{S_T0}")
        a(f"s_and_b32 s{S_T1}, s{S_W}, 2")
        a(f"s_lshl1_add_u32 s{S_T0}, s{S_T1}, s{S_T0}")
        a(f"v_add_lshl_u32 v{VHW}, v{V_T3}, s{S_T0}, 1")
        a(f"v_lshlrev_b32 v{VHR}, 4, v{V_G}")
        a(f"v_lshlrev_b32 v{VSTR}, 3, v{V_T2}")
    def f_setup_b():
        a(f"s_mul_i32 s{S_OK}, s{S_IDX}, {32*1152}")
        for t in range(5):
            a(f"v_add_u32 v{V_T1}, {512*t}, v0")
            a(f"v_mul_u32_u24 v{V_T3}, 3543, v{V_T1}")
            a(f"v_lshrrev_b32 v{V_T3}, 18, v{V_T3}")
            a(f"v_mul_u32_u24 v{V_T4}, 74, v{V_T3}")
            a(f"v_sub_u32 v{V_T4}, v{V_T1}, v{V_T4}")
            a(f"v_cmp_gt_u32 vcc, 72, v{V_T4}")
            a(f"v_lshlrev_b32 v{V_T3}, 1, v{V_T3}")
            a(f"v_sub_u32 v{V_T3}, v{V_T1}, v{V_T3}")
            a(f"v_lshlrev_b32 v{V_T3}, 4, v{V_T3}")
            a(f"v_cndmask_b32 v{vd[t]}, v{V_OOB}, v{V_T3}, vcc")
        a(f"v_cmp_gt_u32 vcc, {32*74-2048}, v0")
        a(f"v_lshrrev_b32 v{V_T1}, 2, v{V_I}")
        a(f"v_and_b32 v{V_T3}, 1, v{V_G}")
        a(f"v_cndmask_b32 v{vd[4]}, v{V_OOB}, v{vd[4]}, vcc")
        a(f"v_lshl_add_u32 v{V_T1}, v{V_T3}, 2, v{V_T1}")
        a(f"v_lshrrev_b32 v{V_T3}, 1, v{V_G}")
        a(f"v_lshl_add_u32 v{V_T1}, v{V_T3}, 4, v{V_T1}")
        a(f"v_mul_u32_u24 v{V_T1}, 1184, v{V_T1}")
        a(f"v_and_b32 v{V_T3}, 3, v{V_L}")
        a(f"v_lshl_add_u32 v{V_T1}, v{V_T3}, 3, v{V_T1}")
        a(f"s_mul_i32 s{S_T1}, s{S_W}, 144")
        a(f"v_add_u32 v{VW2R}, s{S_T1}, v{V_T1}")
    def f_setup_c():
        a(f"s_mul_i32 s{S_T1}, s{S_W}, 144")
        a(f"v_and_b32 v{V_T2}, 7, v{V_L}")
        a(f"s_lshl_b32 s19, s{S_IDX}, 5")
        a(f"s_add_u32 s19, s19, {WS_Z}")
        a(f"s_mul_i32 s{S_T0}, s{S_W}, 9")
        a(f"v_lshrrev_b32 v{V_T1}, 3, v{V_L}")
        a(f"v_cmp_gt_u32 s[{S_L8}:{S_L8+1}], 8, v{V_L}")
        for dst, add in ((VZS, 0), (VZS2, 8)):
            a(f"v_add3_u32 v{V_T3}, v{V_T1}, s{S_T0}, {add}")
            if RM:
                a(f"v_and_b32 v{V_T5}, 1, v{V_T3}")
                a(f"v_lshrrev_b32 v{V_T3}, 1, v{V_T3}")
            a(f"v_mul_u32_u24 v{V_T3}, 4608, v{V_T3}")
            a(f"v_lshl_add_u32 v{V_T3}, v{V_T2}, 2, v{V_T3}")
            a(f"v_add_u32 v{dst}, s19, v{V_T3}")
            if RM:
                a(f"v_and_b32 v{V_T4}, 0xffffe000, v{dst}")
                a(f"v_lshl_add_u32 v{V_T4}, v{V_T5}, 13, v{V_T4}")
                a(f"v_add_u32 v{dst}, v{dst}, v{V_T4}")
        a(f"v_cndmask_b32 v{VZS2}, v{V_OOB}, v{VZS2}, s[{S_L8}:{S_L8+1}]")
        a(f"v_lshl_add_u32 v{V_T3}, v{V_L}, 1, s{S_T1}")
        a(f"buffer_load_ushort v{VX0}, v{V_T3}, {srd(sX)}, 0 offen", tag="xf")
        a(f"v_lshl_add_u32 v{V_T3}, v{V_T2}, 1, s{S_T1}")
        a(f"buffer_load_ushort v{VX1}, v{V_T3}, {srd(sX)}, 0 offen offset:128", tag="xf")
        a(f"s_add_u32 s19, s{S_SIDE}, {real(WS_Y)}")
        a(f"s_lshl1_add_u32 s{S_T2}, s{S_T1}, s19")
        a(f"v_lshl_add_u32 v{VY}, v{V_L}, 2, s{S_T2}")
        ygroup(V_T3, V_T1)
        a(f"v_lshl_add_u32 v{V_T1}, v{V_T2}, 2, v{V_T3}")
        a(f"v_add_u32 v{VYB}, s{S_T2}, v{V_T1}")
        a(f"s_sub_u32 s{S_T0}, s{S_J}, 9")
        a(f"s_lshl_b32 s{S_T0}, s{S_T0}, 7")
        a(f"s_add_u32 s{S_T0}, s{S_T0}, s19")
        a(f"v_cmp_gt_u32 vcc, 64, v0")
        a(f"v_add_u32 v{V_T1}, s{S_T0}, v{V_T1}")
        a(f"s_mul_i32 s{S_T0}, s{S_W}, 384")
        a(f"v_cndmask_b32 v{VGS}, v{V_OOB}, v{V_T1}, vcc")
        a(f"s_add_u32 s{S_T0}, s{S_T0}, {L_HC}")
        a(f"v_mov_b32 v{V_T3}, {L_DUM}")
        a(f"v_mul_u32_u24 v{V_T1}, 57, v{V_L}")
        a(f"v_lshrrev_b32 v{V_T1}, 9, v{V_T1}")
        a(f"v_mad_u32_u24 v{V_T1}, v{V_T1}, 3, v{V_L}")
        a(f"v_lshl_add_u32 v{VH0}, v{V_T1}, 2, s{S_T0}")
        a(f"s_add_u32 s{S_T0}, s{S_T0}, {(64+21)*4}")
        a(f"v_lshl_add_u32 v{VH1}, v{V_T2}, 2, s{S_T0}")
        a(f"v_cmp_eq_u32 vcc, 63, v{V_L}")
        a(f"v_lshlrev_b32 v{V_T1}, 1, v{V_W2}")
        a(f"v_add_u32 v{V_T1}, {L_ST}, v{V_T1}")
        a(f"v_cndmask_b32 v{VSTW}, v{V_T3}, v{V_T1}, vcc")
        a(f"s_lshl_b32 s{S_T2}, s{S_W}, 10")
        a(f"s_add_u32 s{S_T2}, s{S_T2}, {L_W2}")
        a(f"s_mov_b32 s16, {yg(2)}"); a(f"s_mov_b32 s17, {yg(3)}"); a(f"s_mov_b32 s18, {yg(5)}"); a(f"s_mov_b32 s20, {yg(6)}")
    def red8(regs):
        for m in ("quad_perm:[1,0,3,2]", "quad_perm:[2,3,0,1]", "row_half_mirror"):
            for r in regs:
                a(f"v_add_f32_dpp v{r}, v{r}, v{r} {m} {FULL}")
    vphase({RD: [f_setup_c], RD + 1: [f_setup_a], RD + 2: [f_setup_b]}, N)
    publish()
    flush_seq()
    U = [alloc(("u", u)) for u in range(3)]
    gl = f"buffer_load_dword v{U[2]+1}, v{VGS}, {srd(sWS)}, 0 offen sc1"
    for t in range(9): ldF(t)
    a("s_barrier")
    a(gl, tag="g2")
    for t in range(5): ldD(t)
    W2 = [alloc(("w2", u)) for u in range(5)]
    DD = [alloc(("dd", u)) for u in range(5)]
    bs = [alloc(("ys", u)) for u in range(3)]
    yr = [bs[u >> 2] + (u & 3) for u in range(9)]
    so = [("0", 0), ("0", 2304), ("s16", 0), ("s17", 0), ("s17", 2304), ("s18", 0), ("s20", 0), ("s20", 2304)]
    yl = [f"buffer_load_dword v{yr[8]}, v{VYB}, {srd(sWS)}, 0 offen offset:256 sc1"] + \
        [f"buffer_load_dword v{yr[u]}, v{VY}, {srd(sWS)}, {so[u][0]} offen offset:{so[u][1]} sc1" for u in range(8)]
    assert not a.pending("xf")
    for d in range(4):
        a(f"v_and_b32 v{SCR+d}, 0x3f803f80, v{V_M+d}")
    a(f"v_lshlrev_b32 v{VX0}, 16, v{VX0}")
    a(f"v_lshlrev_b32 v{VX1}, 16, v{VX1}")
    a(f"s_mov_b32 s{S_T1}, 0xbfb8aa3b")
    a(f"v_mov_b32 v{V_T5}, 0")
    for t in range(9):
        a.wait(("F", t))
        a(f"v_mfma_f32_16x16x32_bf16 {r4(SCR+4)}, {r4(SCR)}, {r4(slot[('F', t)])}, {r4(SCR+4) if t else 0}")
    a.wait("g2")
    a(f"v_cmp_eq_u32 vcc, -1, v{U[2]+1}")
    a(f"s_bcnt1_i32_b64 s19, vcc")
    a(f"v_mov_b32 v{V_T0}, s19")
    a(f"ds_write_b32 v{V_W2}, v{V_T0} offset:{L_FLAG}")
    a(f"s_mov_b64 exec, s[{S_VAL}:{S_VAL+1}]")
    a(f"ds_write_b128 v{VGW}, {r4(SCR+4)} offset:{L_CP}")
    a(f"s_mov_b64 exec, -1")
    a("s_waitcnt lgkmcnt(0)")
    a("s_barrier")
    a(f"ds_read_b32 v{V_T0}, v{V_T5} offset:{L_FLAG}")
    a(f"ds_read_b32 v{VCS}, v{VGR} offset:{L_CP}")
    a(f"ds_read_b32 v{V_T1}, v{VGR} offset:{L_CP+1152}")
    a(lg(2))
    a(f"v_readfirstlane_b32 s19, v{V_T0}")
    a(f"s_cmp_le_u32 s19, {c['gate2']-1}")
    a("s_cbranch_scc1 L_go2")
    a(f"s_cmp_lg_u32 s{S_W}, 0")
    a("s_cbranch_scc1 L_g2")
    gate("2", gl, U[2] + 1, c["gate2"] - 1, c["gsl2"])
    a("L_g2:")
    a("s_barrier")
    a("L_go2:")
    for l in yl: a(l)
    a("s_waitcnt lgkmcnt(0)")
    a(f"v_add_f32 v{VCS}, v{VCS}, v{V_T1}")
    red8([VCS])
    stamp("w13")
    H0, H1 = V_Q, V_Q + 1
    spoll("F2", yl, [[yr[8]]] + [[r] for r in yr[:8]])
    a(f"v_add_f32_dpp v{H1}, v{yr[8]}, v{yr[8]} row_ror:8 {FULL}")
    a(f"v_add_f32 v{H0}, v{yr[0]}, v{yr[1]}")
    a(f"v_add_f32 v{H0+2}, v{yr[2]}, v{yr[3]}")
    a(f"v_mov_b32 v{V_T0}, v{H1}")
    a(f"v_add_f32 v{H0+3}, v{yr[4]}, v{yr[5]}")
    a(f"v_add_f32 v{V_T1}, v{yr[6]}, v{yr[7]}")
    stamp("got2")
    a(f"v_permlane16_swap_b32 v{H1}, v{V_T0}")
    a(f"v_add_f32 v{H0}, v{H0}, v{H0+2}")
    a(f"v_add_f32 v{H1}, v{H1}, v{V_T0}")
    a(f"v_add_f32 v{H0+3}, v{H0+3}, v{V_T1}")
    a(f"v_mov_b32 v{V_T0}, v{H1}")
    a(f"v_add_f32 v{H0}, v{H0}, v{H0+3}")
    a(f"v_cvt_pk_bf16_f32 v{H0}, v{H0}, v{H0}")
    a(f"v_permlane32_swap_b32 v{H1}, v{V_T0}")
    a(f"v_and_b32 v{H0}, 0xffff0000, v{H0}")
    a(f"v_add_f32 v{H1}, v{H1}, v{V_T0}")
    a(f"v_add_f32 v{H0}, v{H0}, v{VX0}")
    a(f"v_cvt_pk_bf16_f32 v{H1}, v{H1}, v{H1}")
    a(f"v_cvt_pk_bf16_f32 v{H0}, v{H0}, v{H0}")
    a(f"v_and_b32 v{H1}, 0xffff0000, v{H1}")
    a(f"ds_write_b32 v{VH0}, v{H0}")
    a(f"v_add_f32 v{H1}, v{H1}, v{VX1}")
    a(f"v_cvt_pk_bf16_f32 v{H1}, v{H1}, v{H1}")
    a(f"ds_write_b32 v{VH1}, v{H1}")
    a(f"ds_read_b128 {r4(U[0])}, v{VCR} offset:{L_HC}")
    a(f"ds_read_b128 {r4(U[1])}, v{VCR} offset:{L_HC+16}")
    a(f"ds_read_b32 v{U[2]}, v{VCR} offset:{L_HC+32}")
    S1, S2 = V_T2, V_T3
    a(f"v_and_b32 v{H0}, 0xffff0000, v{H0}")
    a(f"v_and_b32 v{H1}, 0xffff0000, v{H1}")
    a(f"v_cndmask_b32 v{H1}, 0, v{H1}, s[{S_L8}:{S_L8+1}]")
    a(f"v_add_f32 v{S1}, v{H0}, v{H1}")
    a(f"v_mul_f32 v{S2}, v{H0}, v{H0}")
    a(f"v_fmac_f32 v{S2}, v{H1}, v{H1}")
    rs = wred_steps("v_add_f32", [S1, S2])
    for t_ in rs.pop(0): a(t_)
    a("s_waitcnt lgkmcnt(0)")
    cf = [U[0] + k for k in range(4)] + [U[1] + k for k in range(4)] + [U[2]]
    for t in range(9):
        A = A2[t & 1]
        for d in range(4):
            a(f"v_and_b32 v{A+d}, v{cf[t]}, v{V_M+d}")
        if t: a(f"v_mfma_f32_16x16x32_bf16 {r4(V_ACC)}, {r4(A2[(t-1)&1])}, {r4(slot[('F', t-1)])}, {r4(V_ACC) if t > 1 else 0}")
        if rs:
            for t_ in rs.pop(0): a(t_)
        elif t == 5: a(f"ds_write_b64 v{VSTW}, {r2(S1)}")
        elif t == 7:
            a("s_waitcnt lgkmcnt(0)")
            a("s_barrier")
            a(f"ds_read_b64 {r2(S1)}, v{VSTR} offset:{L_ST}")
    a(f"v_mfma_f32_16x16x32_bf16 {r4(V_ACC)}, {r4(A2[0])}, {r4(slot[('F', 8)])}, {r4(V_ACC)}")
    a("s_waitcnt lgkmcnt(0)")
    red8([S1, S2])
    a(f"s_mov_b64 exec, s[{S_VAL}:{S_VAL+1}]")
    a(f"ds_write_b128 v{VGW}, {r4(V_ACC)} offset:{L_GP}")
    a(f"s_mov_b64 exec, -1")
    a(f"v_mul_f32 v{S1}, 0x3ae38e39, v{S1}")
    a(f"v_mul_f32 v{S2}, 0x3ae38e39, v{S2}")
    ln_finish(S1, S2)
    a("s_waitcnt lgkmcnt(0)")
    a("s_barrier")
    stamp("gu")
    G = V_T4
    a(f"ds_read_b32 v{G}, v{VGR} offset:{L_GP}")
    a(f"ds_read_b32 v{V_T1}, v{VGR} offset:{L_GP+1152}")
    for t in range(5):
        for h in range(2):
            a(f"ds_read_b64_tr_b16 {r2(W2[t]+2*h)}, v{VW2R} offset:{L_W2+32*t+8*1184*h}")
    a(f"v_mul_f32 v{VCS}, v{VCS}, v{S1}")
    a(lg(10))
    a(f"v_add_f32 v{G}, v{G}, v{V_T1}")
    red8([G])
    a(f"v_sub_f32 v{G}, v{G}, v{VCS}")
    a(f"v_mul_f32 v{G}, v{G}, v{S2}")
    bf16r(G, G)
    a(f"v_mov_b32 v{V_T1}, v{G}")
    a(f"v_mul_f32 v{V_T0}, s{S_T1}, v{G}")
    a(f"v_exp_f32 v{V_T0}, v{V_T0}")
    a(f"v_permlane32_swap_b32 v{G}, v{V_T1}")
    a(f"v_add_f32 v{V_T0}, 1.0, v{V_T0}")
    a(f"v_rcp_f32 v{V_T0}, v{V_T0}")
    a(f"s_mov_b32 exec_hi, 0")
    a(f"v_mul_f32 v{V_T0}, v{G}, v{V_T0}")
    bf16r(V_T0, V_T0)
    a(f"v_mul_f32 v{V_T0}, v{V_T0}, v{V_T1}")
    a(f"v_cvt_pk_bf16_f32 v{V_T0}, v{V_T0}, v{V_T0}")
    a(f"ds_write_b16 v{VHW}, v{V_T0} offset:{L_HID}")
    a(f"s_mov_b32 exec_hi, -1")
    a("s_waitcnt lgkmcnt(0)")
    a("s_barrier")
    a(f"ds_read_b128 {r4(V_A)}, v{VHR} offset:{L_HID}")
    a("s_waitcnt lgkmcnt(0)")
    for t in (4, 0, 1, 2, 3):
        a(f"v_mfma_f32_16x16x32_bf16 {r4(DD[t])}, {r4(V_A)}, {r4(W2[t])}, 0")
    a(f"v_min_u32 v{DD[4]}, -2, v{DD[4]}")
    a(f"buffer_store_dword v{DD[4]}, v{VZS2}, {srd(sWS)}, 0 offen sc1")
    for t in range(1, 4):
        a(f"v_mov_b32_dpp v{DD[0]}, v{DD[t]} quad_perm:[0,1,2,3] row_mask:{hex(1<<t)} bank_mask:0xf")
    a(f"v_min_u32 v{DD[0]}, -2, v{DD[0]}")
    a(f"buffer_store_dword v{DD[0]}, v{VZS}, {srd(sWS)}, 0 offen sc1")
    stamp("zpub")
    finish("F")

    a("L_done:")
    a("s_endpgm")
    a("L_end:")
    a.raw('.section .rodata,"a"'); a.raw(".p2align 6"); a.raw(f".amdhsa_kernel {NAME}")
    a.raw("  .amdhsa_next_free_vgpr 256"); a.raw("  .amdhsa_next_free_sgpr 102"); a.raw("  .amdhsa_accum_offset 256")
    a.raw("  .amdhsa_group_segment_fixed_size 0"); a.raw("  .amdhsa_kernarg_size 96"); a.raw("  .amdhsa_user_sgpr_count 2")
    a.raw("  .amdhsa_user_sgpr_kernarg_segment_ptr 1"); a.raw("  .amdhsa_system_sgpr_workgroup_id_x 1")
    a.raw(".end_amdhsa_kernel")
    return a.text()

if __name__ == "__main__":
    import ast
    kw = {}
    out = sys.argv[1]
    for s in sys.argv[2:]:
        k, v = s.split("=", 1)
        try: v = ast.literal_eval(v)
        except Exception: pass
        kw[k] = v
    open(out, "w").write(gen(**kw))
```
